```python
import torch

def _softmax(x, axis=-1):
    return torch.softmax(x, dim=axis)
def _gelu(x):
    return torch.nn.functional.gelu(x, approximate="tanh")
def _silu(x):
    return torch.nn.functional.silu(x)
def _sigmoid(x):
    return torch.sigmoid(x)
def _layernorm(x, axis=-1, eps=1e-5):
    m = x.mean(dim=axis, keepdim=True)
    v = x.var(dim=axis, keepdim=True, unbiased=False)
    return (x - m) / torch.sqrt(v + eps)
def _scatter_add(tgt, idx, src, axis=0):
    return tgt.clone().index_add_(axis, idx, src)
def _segment_sum(src, seg, n):
    out = torch.zeros((n,) + src.shape[1:], dtype=src.dtype)
    return out.index_add_(0, seg, src)
def _pad(x, pw):
    flat = tuple(v for pair in reversed(pw) for v in pair)
    return torch.nn.functional.pad(x, flat)

kernel_name = 'interleave_layers__spectral_gfnet__glu_gated_bilinear__prompt'

def setup_inputs():

    _w = (lambda a: (lambda t: t.to(torch.bfloat16) if t.is_floating_point() else t)(torch.as_tensor(a)))
    def _A_setup():
        B, S, D = 1, 2048, 1024
        Df = D // 2 + 1
        return {
            "x": _w((lambda *s: torch.randn(*s, dtype=torch.bfloat16) * 0.05)(B, S, D)),
            "w_r": _w((lambda *s: torch.randn(*s, dtype=torch.bfloat16) * 0.4)(S, Df) * 0.02),
            "w_i": _w((lambda *s: torch.randn(*s, dtype=torch.bfloat16) * 0.4)(S, Df) * 0.02),
        }
    _A_in = _A_setup()

    def _B_setup():
        B, S, D, F = 1, 2048, 1024, 3584
        return {
            "x": _w((lambda *s: torch.randn(*s, dtype=torch.bfloat16) * 0.05)(B, S, D)),
            "w_gate": _w((lambda *s: torch.randn(*s, dtype=torch.bfloat16) * 0.2)(D, F) * (D ** -0.5)),
            "w_up": _w((lambda *s: torch.randn(*s, dtype=torch.bfloat16) * 0.2)(D, F) * (D ** -0.5)),
            "w_down": _w((lambda *s: torch.randn(*s, dtype=torch.bfloat16) * 0.2)(F, D) * (F ** -0.5)),
        }
    _B_in = _B_setup()

    return {
        "A_x": _A_in["x"],
        "A_w_r": _A_in["w_r"],
        "A_w_i": _A_in["w_i"],
        "B_x": _B_in["x"],
        "B_w_gate": _B_in["w_gate"],
        "B_w_up": _B_in["w_up"],
        "B_w_down": _B_in["w_down"],
    }

def reference(A_x, A_w_r, A_w_i, B_x, B_w_gate, B_w_up, B_w_down):
    def _A_ref(x, w_r, w_i):
        B, S, D = x.shape
        X = (lambda x, axes=(-2,-1): torch.fft.rfft2(x.float(), dim=axes))(x, axes=(-2, -1))
        W = w_r + 1j * w_i
        X = X * W
        y = (lambda x, s, axes=(-2,-1): torch.fft.irfft2(x, s=s, dim=axes).to(torch.bfloat16))(X, (S, D), axes=(-2, -1))
        return y

    def _B_ref(x, w_gate, w_up, w_down):
        g = torch.einsum("bsd,df->bsf", x, w_gate)
        u = torch.einsum("bsd,df->bsf", x, w_up)
        h = g * u
        return torch.einsum("bsf,fd->bsd", h, w_down)

    x = A_x
    x = x + _A_ref(_layernorm(x, axis=-1), A_w_r, A_w_i)
    x = x + _B_ref(_layernorm(x, axis=-1), B_w_gate, B_w_up, B_w_down)
    x = x + _A_ref(_layernorm(x, axis=-1), A_w_r, A_w_i)
    x = x + _B_ref(_layernorm(x, axis=-1), B_w_gate, B_w_up, B_w_down)
    return x
```

```python
class Op:
    __slots__ = ("text", "kind", "tag")
    def __init__(self, text, kind="x", tag=None):
        self.text, self.kind, self.tag = text, kind, tag

def kd(name, vgpr, accum, sgpr=96):
    return f""".section .rodata,"a"
.p2align 6
.amdhsa_kernel {name}
  .amdhsa_next_free_vgpr {vgpr}
  .amdhsa_next_free_sgpr {sgpr}
  .amdhsa_accum_offset {accum}
  .amdhsa_group_segment_fixed_size 0
  .amdhsa_kernarg_size 80
  .amdhsa_user_sgpr_count 2
  .amdhsa_user_sgpr_kernarg_segment_ptr 1
  .amdhsa_system_sgpr_workgroup_id_x 1
  .amdhsa_float_denorm_mode_32 3
.end_amdhsa_kernel
.text
"""

def entry(name):
    return f".globl {name}\n.p2align 8\n.type {name},@function\n{name}:"

def resolve_waits(ops):
    vm, ds = [], []
    for o in ops:
        if o.kind == "vm": vm.append(o.tag)
        elif o.kind == "ds": ds.append(o.tag)
        elif o.kind in ("wvm", "wds"):
            q = vm if o.kind == "wvm" else ds
            tags = o.tag if isinstance(o.tag, list) else [o.tag]
            last = -1
            for i, t in enumerate(q):
                if t in tags: last = i
            assert last >= 0, ("wait for unknown tag", o.tag)
            n = len(q) - 1 - last
            mx = 63 if o.kind == "wvm" else 15
            n = min(n, mx)
            o.text = f"s_waitcnt {'vmcnt' if o.kind == 'wvm' else 'lgkmcnt'}({n})"
    return ops

def fold_loop(stages, P, label, sreg):
    T = len(stages)
    best = (0, 0)
    for s in range(T):
        n = 1
        while s + (n + 1) * P <= T and all(stages[s + n * P + i] == stages[s + i] for i in range(P)): n += 1
        if s + P <= T and n > best[1]: best = (s, n)
    s, n = best
    out = []
    if n < 2:
        for st in stages: out += st
        return out
    for st in stages[:s]: out += st
    out.append(f"s_mov_b32 {sreg}, {n}")
    out.append(f"{label}:")
    body = []
    for st in stages[s:s + P]: body += st
    out += body[:-2]
    out.append(f"s_sub_u32 {sreg}, {sreg}, 1")
    out.append(body[-2])
    out.append(f"s_cmp_lg_u32 {sreg}, 0")
    out.append(body[-1])
    assert not body[-1].startswith("s_add") and not body[-1].startswith("s_cmp") and not body[-1].startswith("s_sub") and not body[-1].startswith("s_and"), body[-1]
    out.append(f"s_cbranch_scc1 {label}")
    for st in stages[s + n * P:]: out += st
    return out

def srd(a, d, lo, hi, nbytes):
    a(f"s_mov_b32 s{d}, {lo}")
    a(f"s_and_b32 s{d+1}, {hi}, 0xffff")
    a(f"s_mov_b32 s{d+2}, {nbytes}")
    a(f"s_mov_b32 s{d+3}, 0x20000")

def stamp(a, opt, i):
    if opt.get("stamp"):
        a(f"s_memrealtime s[{64+2*i}:{65+2*i}]")
def stamp_out(a, opt, n, slot, vt):
    if not opt.get("stamp"): return
    a("s_waitcnt vmcnt(0)")
    a(f"s_memrealtime s[{64+2*n}:{65+2*n}]")
    a("s_load_dwordx2 s[88:89], s[0:1], 72")
    a("s_waitcnt lgkmcnt(0)")
    a(f"s_add_u32 s88, s88, {200*(1<<20) + slot*32768*2}"); a("s_addc_u32 s89, s89, 0")
    a("s_and_b32 s89, s89, 0xffff"); a("s_mov_b32 s90, 65536"); a("s_mov_b32 s91, 0x20000")
    a(f"v_mbcnt_lo_u32_b32 v{vt}, -1, 0"); a(f"v_mbcnt_hi_u32_b32 v{vt}, -1, v{vt}")
    a(f"s_lshl_b32 s87, s2, 2"); a(f"s_add_u32 s87, s87, s29"); a("s_lshl_b32 s87, s87, 5")
    a(f"v_cmp_eq_u32 vcc, 0, v{vt}"); a("s_and_saveexec_b64 s[92:93], vcc")
    for i in range(n + 1):
        a(f"v_mov_b32 v{vt+1}, s{64+2*i}")
        a(f"buffer_store_dword v{vt+1}, v{vt}, s[88:91], s87 offen offset:{4*i}")
```

```python
from common import *
import struct
MB = 1 << 20
ZS = 16384 + 128
sWave = 29

def fl(x): return "0x%08x" % struct.unpack("<I", struct.pack("<f", x))[0]
def rho(h, r): return 8 * (r >> 2) + 4 * h + (r & 3)

class RA:
    def __init__(self, start=1): self.n = start
    def __call__(self, k=1, al=1):
        self.n = (self.n + al - 1) // al * al
        r = self.n; self.n += k; return r

def vr(b, n): return f"v[{b}:{b+n-1}]"
def mfma(a, d, x, y, first): a(f"v_mfma_f32_32x32x16_bf16 {vr(d,16)}, {vr(x,4)}, {vr(y,4)}, {'0' if first else vr(d,16)}")

def ws_srd(a, d, soff, nbytes):
    a(f"s_add_u32 s{d}, s6, {soff}"); a(f"s_addc_u32 s{d+1}, s7, 0"); a(f"s_and_b32 s{d+1}, s{d+1}, 0xffff")
    a(f"s_mov_b32 s{d+2}, {nbytes}"); a(f"s_mov_b32 s{d+3}, 0x20000")

def lane_wave(a, vL, vt):
    a(f"v_lshrrev_b32 v{vt}, 6, v0")
    a(f"v_and_b32 v{vL}, 63, v0")
    a(f"v_readfirstlane_b32 s{sWave}, v{vt}")

def sincos16(a, f, base, mult, co, si, tmp):
    for r in range(16):
        m = mult(r)
        t = tmp + (r & 1)
        if m == 0: src = base
        else: a(f"v_fmamk_f32 v{t}, v{f}, {fl(float(m))}, v{base}"); src = t
        a(f"v_cos_f32 v{co+r}, v{src}"); a(f"v_sin_f32 v{si+r}, v{src}")

def f32consts(a, vL, C, S, NS, t32, tmp):
    f, base = tmp + 2, tmp + 3
    a(f"v_and_b32 v{f}, 31, v{vL}"); a(f"v_cvt_f32_u32 v{f}, v{f}"); a(f"v_mul_f32 v{f}, {fl(1/32)}, v{f}")
    a(f"v_lshrrev_b32 v{base}, 5, v{vL}"); a(f"v_cvt_f32_u32 v{base}, v{base}"); a(f"v_mul_f32 v{base}, 4.0, v{base}"); a(f"v_mul_f32 v{base}, v{base}, v{f}")
    sincos16(a, f, base, lambda r: rho(0, r), t32, t32 + 16, tmp)
    for p in range(8):
        a(f"v_cvt_pk_bf16_f32 v{C+p}, v{t32+2*p}, v{t32+2*p+1}")
        a(f"v_cvt_pk_bf16_f32 v{S+p}, v{t32+16+2*p}, v{t32+16+2*p+1}")
        a(f"v_cvt_pk_bf16_f32 v{NS+p}, -v{t32+16+2*p}, -v{t32+16+2*p+1}")

def cmul_pack(a, re, im, co, si, conj, PR, PI, tmp):
    for p in range(8):
        r = 2 * p
        t = tmp + 4 * (p & 1)
        a(f"v_pk_mul_f32 {vr(t,2)}, {vr(re+r,2)}, {vr(co+r,2)}")
        a(f"v_pk_mul_f32 {vr(t+2,2)}, {vr(im+r,2)}, {vr(co+r,2)}")
        neg = " neg_lo:[0,1,0] neg_hi:[0,1,0]"
        a(f"v_pk_fma_f32 {vr(t,2)}, {vr(im+r,2)}, {vr(si+r,2)}, {vr(t,2)}" + (neg if conj else ""))
        a(f"v_pk_fma_f32 {vr(t+2,2)}, {vr(re+r,2)}, {vr(si+r,2)}, {vr(t+2,2)}" + ("" if conj else neg))
        a(f"v_cvt_pk_bf16_f32 v{PR+p}, v{t}, v{t+1}")
        a(f"v_cvt_pk_bf16_f32 v{PI+p}, v{t+2}, v{t+3}")

def cstage(a, DR, DI, PR, PI, C, S, NS, fwd, dataA):
    s1, s2 = (S, NS) if fwd else (NS, S)
    def m(d, x, c, first):
        if dataA: mfma(a, d, x, c, first)
        else: mfma(a, d, c, x, first)
    for t in range(2):
        m(DR, PR + 4 * t, C + 4 * t, t == 0)
        m(DI, PI + 4 * t, C + 4 * t, t == 0)
        m(DR, PI + 4 * t, s1 + 4 * t, False)
        m(DI, PR + 4 * t, s2 + 4 * t, False)

def reduce4(a, A, B, Cc, D, s0):
    a(f"v_permlane32_swap_b32 v{A}, v{B}"); a(f"v_permlane32_swap_b32 v{Cc}, v{D}")
    a(f"v_add_f32 v{A}, v{A}, v{B}"); a(f"v_add_f32 v{Cc}, v{Cc}, v{D}")
    a(f"v_permlane16_swap_b32 v{A}, v{Cc}")
    a(f"v_add_f32 v{A}, v{A}, v{Cc}")
    for k in (8, 4, 2, 1): a(f"v_add_f32_dpp v{A}, v{A}, v{A} row_ror:{k} row_mask:0xf bank_mask:0xf")
    for i, ln in enumerate((0, 32, 16, 48)): a(f"v_readlane_b32 s{s0+i}, v{A}, {ln}")

def ln_coef(a, ssum, ssq, vm, vrs):
    a(f"v_mul_f32 v{vm}, {fl(1/1024)}, s{ssum}" if False else f"v_mov_b32 v{vm}, s{ssum}")
    a(f"v_mov_b32 v{vrs}, s{ssq}")
    a(f"v_mul_f32 v{vm}, {fl(1/1024)}, v{vm}")
    a(f"v_mul_f32 v{vrs}, {fl(1/1024)}, v{vrs}")
    a(f"v_fma_f32 v{vrs}, -v{vm}, v{vm}, v{vrs}")
    a(f"v_max_f32 v{vrs}, 0, v{vrs}")
    a(f"v_add_f32 v{vrs}, {fl(1e-5)}, v{vrs}")
    a(f"v_rsq_f32 v{vrs}, v{vrs}")
    a(f"v_mul_f32 v{vm}, v{vm}, v{vrs}")
    a(f"v_sub_f32 v{vm}, 0, v{vm}")

def prep(a, name, opt):
    R = RA(1)
    vL, vT, vA, vO = R(), R(), R(), R()
    X = R(32, 4); Y = R(16, 4)
    a(f"L_{name}_prep:")
    a("s_load_dwordx4 s[36:39], s[0:1], 8")
    a("s_load_dwordx2 s[6:7], s[0:1], 72")
    lane_wave(a, vL, vT)
    a("s_sub_u32 s30, s2, 256"); a("s_and_b32 s31, s30, 7"); a("s_bfe_u32 s32, s30, 0x20003"); a("s_lshr_b32 s33, s30, 5")
    a(f"s_lshl_b32 s34, s31, 2"); a(f"s_add_u32 s34, s34, s{sWave}"); a("s_lshl_b32 s34, s34, 4")
    a(f"v_and_b32 v{vT}, 15, v{vL}"); a(f"v_add_u32 v{vT}, s34, v{vT}")
    a(f"v_and_b32 v{vO}, 255, v{vT}"); a(f"v_lshlrev_b32 v{vO}, 14, v{vO}")
    a(f"v_lshrrev_b32 v{vA}, 8, v{vT}"); a(f"v_lshl_add_u32 v{vO}, v{vA}, 13, v{vO}")
    a(f"v_cmp_eq_u32 vcc, 0, v{vT}"); a(f"v_mov_b32 v{vA}, 512"); a(f"v_cndmask_b32 v{vT}, v{vT}, v{vA}, vcc")
    a(f"v_lshrrev_b32 v{vA}, 4, v{vL}")
    a(f"v_lshl_add_u32 v{vO}, v{vA}, 4, v{vO}")
    a(f"v_mul_u32_u24 v{vA}, 2052, v{vA}"); a(f"v_lshl_add_u32 v{vA}, v{vT}, 1, v{vA}")
    a("s_lshl_b32 s34, s33, 4"); a("s_add_u32 s34, s34, s32"); a(f"s_mul_i32 s34, s34, {16*1026}")
    a("s_lshl_b32 s35, s33, 2"); a("s_add_u32 s35, s35, s32"); a("s_lshl_b32 s35, s35, 7")
    a("s_waitcnt lgkmcnt(0)")
    srd(a, 8, "s36", "s37", 2048 * 1026); srd(a, 12, "s38", "s39", 2048 * 1026)
    ws_srd(a, 16, "s5", 4 * MB)
    for g in range(4):
        for j in range(4):
            off = ((g & 1) + 8 * (g >> 1) + 64 * j) * 1026
            a(f"s_add_u32 s30, s34, {off}")
            a(f"buffer_load_ushort v{X+8*g+j}, v{vA}, s[8:11], s30 offen")
            a(f"buffer_load_ushort v{X+8*g+4+j}, v{vA}, s[12:15], s30 offen")
    for g in range(4):
        a(f"s_waitcnt vmcnt({8*(3-g)+g})")
        for j in range(4): a(f"v_lshl_or_b32 v{Y+4*g+j}, v{X+8*g+4+j}, 16, v{X+8*g+j}")
        a(f"s_add_u32 s30, s35, {(g&1)*4096 + (g>>1)*64}")
        a(f"buffer_store_dwordx4 {vr(Y+4*g,4)}, v{vO}, s[16:19], s30 offen {opt.get('sf','sc1')}")
    a("s_endpgm")

def k1(name, opt):
    L = []; a = L.append
    R = RA(1)
    vL, vT, vT2, vA = R(), R(), R(), R()
    tmp = R(8, 2); X = R(16, 4); F = R(32, 2)
    C, S, NS = R(8, 4), R(8, 4), R(8, 4)
    TC, TS = R(16, 2), R(16, 2)
    PR, PI = R(8, 4), R(8, 4); DR, DI = R(16, 4), R(16, 4)
    vW, vTr, vW2, vSt = R(), R(), R(), R(); RP = R(4); RM = R(4)
    OB, WST, NST = 16384, 4896, 9984
    a(f"L_{name}:")
    stamp(a, opt, 0)
    a("s_cmp_ge_u32 s2, s34"); a(f"s_cbranch_scc1 L_{name}_end")
    a("s_cmp_ge_u32 s2, 256"); a(f"s_cbranch_scc1 L_{name}_prep")
    a("s_load_dwordx2 s[36:37], s[0:1], 0")
    a("s_load_dwordx2 s[6:7], s[0:1], 72")
    lane_wave(a, vL, vT)
    a(f"v_lshlrev_b32 v{vA}, 4, v{vL}")
    a("s_and_b32 s30, s2, 31"); a("s_lshr_b32 s31, s2, 5"); a("s_lshl_b32 s31, s31, 6"); a("s_add_u32 s30, s30, s31")
    a(f"s_lshr_b32 s31, s{sWave}, 1"); a("s_lshl_b32 s31, s31, 5"); a("s_add_u32 s30, s30, s31")
    a(f"s_and_b32 s31, s{sWave}, 1"); a("s_lshl_b32 s31, s31, 9"); a("s_add_u32 s30, s30, s31")
    a("s_lshl_b32 s30, s30, 11"); a(f"s_add_u32 s31, s30, {2*MB}")
    a("s_waitcnt lgkmcnt(0)")
    a("s_add_u32 s40, s6, s35"); a("s_addc_u32 s41, s7, 0")
    a("s_cmp_eq_u32 s3, 1"); a("s_cselect_b32 s8, s36, s40"); a("s_cselect_b32 s9, s37, s41")
    a("s_and_b32 s9, s9, 0xffff"); a(f"s_mov_b32 s10, {4*MB}"); a("s_mov_b32 s11, 0x20000")
    a(f"buffer_load_dwordx4 {vr(X,4)}, v{vA}, s[8:11], s30 offen")
    a(f"buffer_load_dwordx4 {vr(X+4,4)}, v{vA}, s[8:11], s30 offen offset:1024")
    a(f"buffer_load_dwordx4 {vr(X+8,4)}, v{vA}, s[8:11], s31 offen")
    a(f"buffer_load_dwordx4 {vr(X+12,4)}, v{vA}, s[8:11], s31 offen offset:1024")
    ws_srd(a, 12, "s4", 256 * ZS)
    f32consts(a, vL, C, S, NS, F, tmp)
    a(f"v_mul_f32 v{tmp+2}, {fl(1/32)}, v{tmp+2}"); a(f"v_mul_f32 v{tmp+3}, {fl(1/32)}, v{tmp+3}")
    sincos16(a, tmp + 2, tmp + 3, lambda r: rho(0, r), TC, TS, tmp)
    a(f"s_lshr_b32 s30, s{sWave}, 1"); a(f"s_and_b32 s31, s{sWave}, 1")
    a("s_lshl_b32 s32, s30, 13"); a("s_lshl_b32 s33, s31, 11"); a("s_add_u32 s32, s32, s33")
    a(f"v_add_u32 v{vW}, s32, v{vA}")
    a(f"v_lshrrev_b32 v{vT}, 5, v{vL}"); a(f"v_bfe_u32 v{vT2}, v{vL}, 2, 2"); a(f"v_lshl_add_u32 v{vT2}, v{vT}, 2, v{vT2}")
    a(f"v_lshlrev_b32 v{vTr}, 6, v{vT2}")
    a(f"v_bfe_u32 v{vT2}, v{vL}, 4, 1"); a(f"v_lshl_add_u32 v{vTr}, v{vT2}, 5, v{vTr}")
    a(f"v_and_b32 v{vT2}, 3, v{vL}"); a(f"v_lshl_add_u32 v{vTr}, v{vT2}, 3, v{vTr}")
    a(f"s_lshl_b32 s32, s{sWave}, 12"); a(f"v_add_u32 v{vTr}, s32, v{vTr}")
    a(f"s_mul_i32 s32, s30, {NST}"); a(f"s_mul_i32 s33, s31, {WST}"); a("s_add_u32 s32, s32, s33"); a(f"s_add_u32 s32, s32, {OB}")
    a(f"v_and_b32 v{vT2}, 31, v{vL}"); a(f"v_mul_u32_u24 v{vW2}, 144, v{vT2}")
    a(f"v_lshrrev_b32 v{vT2}, 3, v{vT2}"); a(f"v_lshl_add_u32 v{vW2}, v{vT2}, 6, v{vW2}")
    a(f"v_lshl_add_u32 v{vW2}, v{vT}, 4, v{vW2}"); a(f"v_add_u32 v{vW2}, s32, v{vW2}")
    a(f"s_lshl_b32 s32, s{sWave}, 4")
    a(f"v_lshrrev_b32 v{vT}, 2, v{vL}"); a(f"v_add_u32 v{vT}, s32, v{vT}")
    a(f"v_mul_u32_u24 v{vSt}, {ZS}, v{vT}"); a(f"v_and_b32 v{vT2}, 3, v{vL}"); a(f"v_lshl_add_u32 v{vSt}, v{vT2}, 4, v{vSt}")
    a(f"v_bfe_u32 v{vT2}, v{vL}, 1, 1"); a(f"v_lshl_add_u32 v{vT}, v{vT2}, 8, v{vT}")
    a(f"v_and_b32 v{vT2}, 1, v{vL}"); a(f"v_mul_u32_u24 v{vT2}, {WST}, v{vT2}"); a(f"v_add_u32 v{vT2}, {OB}, v{vT2}")
    def pos(dst, l):
        a(f"v_lshrrev_b32 v{tmp}, 5, v{l}"); a(f"v_lshl_add_u32 v{tmp}, v{tmp}, 2, v{l}")
        a(f"v_lshrrev_b32 v{tmp+1}, 8, v{l}"); a(f"v_lshl_add_u32 v{tmp}, v{tmp+1}, 4, v{tmp}")
        a(f"v_lshl_add_u32 v{dst}, v{tmp}, 2, v{vT2}")
    a(f"v_mov_b32 v{tmp+4}, 512"); a(f"v_cmp_eq_u32 vcc, 0, v{vT}")
    a(f"v_sub_u32 v{tmp+5}, 1024, v{vT}")
    a(f"v_cndmask_b32 v{tmp+6}, v{vT}, v{tmp+4}, vcc"); pos(RP, tmp + 6)
    a(f"v_cndmask_b32 v{tmp+6}, v{tmp+5}, v{tmp+4}, vcc"); pos(RM, tmp + 6)
    a(f"v_add_u32 v{tmp+6}, 64, v{vT}"); pos(RP + 1, tmp + 6)
    a(f"v_subrev_u32 v{tmp+6}, 64, v{tmp+5}"); pos(RM + 1, tmp + 6)
    for i in (2, 3):
        a(f"v_add_u32 v{RP+i}, {(i-1)*288}, v{RP+1}"); a(f"v_subrev_u32 v{RM+i}, {(i-1)*288}, v{RM+1}")
    a("s_lshl_b32 s42, s2, 6")
    for i in range(1, 4): a(f"s_add_u32 s{42+i}, s42, {i*64*ZS}")
    stamp(a, opt, 1)
    a(f"v_mov_b32 v{tmp+4}, 0x3f803f80")
    for rw in range(2):
        a(f"s_waitcnt vmcnt({2*(1-rw)})")
        x = X + 8 * rw
        a(f"v_dot2_f32_bf16 v{tmp+2*rw}, v{x}, v{tmp+4}, 0"); a(f"v_dot2_f32_bf16 v{tmp+2*rw+1}, v{x}, v{x}, 0")
        for p in range(1, 8):
            a(f"v_dot2_f32_bf16 v{tmp+2*rw}, v{x+p}, v{tmp+4}, v{tmp+2*rw}"); a(f"v_dot2_f32_bf16 v{tmp+2*rw+1}, v{x+p}, v{x+p}, v{tmp+2*rw+1}")
    a("s_nop 2")
    reduce4(a, tmp, tmp + 1, tmp + 2, tmp + 3, 46)
    for p in range(16):
        a(f"v_lshlrev_b32 v{F+2*p}, 16, v{X+p}"); a(f"v_and_b32 v{F+2*p+1}, 0xffff0000, v{X+p}")
    ln_coef(a, 46, 47, tmp, tmp + 2); ln_coef(a, 48, 49, tmp + 4, tmp + 6)
    bc = " op_sel_hi:[1,0,0]"
    for p in range(8):
        fa, fb = F + 2 * p, F + 16 + 2 * p
        a(f"v_pk_fma_f32 {vr(fa,2)}, {vr(fa,2)}, {vr(tmp+2,2)}, {vr(tmp,2)}{bc}")
        a(f"v_pk_fma_f32 {vr(fb,2)}, {vr(fb,2)}, {vr(tmp+6,2)}, {vr(tmp+4,2)}{bc}")
        a(f"v_pk_add_f32 {vr(DR,2)}, {vr(fa,2)}, {vr(fb,2)}")
        a(f"v_pk_add_f32 {vr(DR+2,2)}, {vr(fa,2)}, {vr(fb,2)} neg_lo:[0,1] neg_hi:[0,1]")
        a(f"v_cvt_pk_bf16_f32 v{X+p}, v{DR}, v{DR+1}"); a(f"v_cvt_pk_bf16_f32 v{X+8+p}, v{DR+2}, v{DR+3}")
        if p == 3: a(f"ds_write_b128 v{vW}, {vr(X,4)}"); a(f"ds_write_b128 v{vW}, {vr(X+8,4)} offset:4096")
    a(f"ds_write_b128 v{vW}, {vr(X+4,4)} offset:1024"); a(f"ds_write_b128 v{vW}, {vr(X+12,4)} offset:5120")
    a("s_waitcnt lgkmcnt(0)"); a("s_barrier")
    for t in range(2):
        for part, P in ((0, PR), (1, PI)):
            for jj in range(2): a(f"ds_read_b64_tr_b16 {vr(P+4*t+2*jj,2)}, v{vTr} offset:{part*2048 + (16*t+8*jj)*64}")
    a("s_waitcnt lgkmcnt(0)")
    stamp(a, opt, 2)
    cstage(a, DR, DI, PR, PI, C, S, NS, True, True)
    cmul_pack(a, DR, DI, TC, TS, False, PR, PI, tmp)
    cstage(a, DR, DI, PR, PI, C, S, NS, True, True)
    for r in range(16):
        a(f"v_cvt_pk_bf16_f32 v{X+r}, v{DR+r}, v{DI+r}")
        if r % 4 == 3: a(f"ds_write_b128 v{vW2}, {vr(X+r-3,4)} offset:{32*(r>>2)}")
    a("s_waitcnt lgkmcnt(0)"); a("s_barrier")
    for i in range(4):
        a(f"ds_read2st64_b32 {vr(X+4*i,2)}, v{RP+i} offset0:0 offset1:{NST//256}")
        a(f"ds_read2st64_b32 {vr(X+4*i+2,2)}, v{RM+i} offset0:0 offset1:{NST//256}")
    for i in range(4):
        a(f"s_waitcnt lgkmcnt({2*(3-i)})")
        a(f"buffer_store_dwordx4 {vr(X+4*i,4)}, v{vSt}, s[12:15], s{42+i} offen {opt.get('sf','sc1')}")
    stamp(a, opt, 3)
    stamp_out(a, opt, 4, opt.get("slot", 0), tmp)
    a(f"L_{name}_end:")
    a("s_endpgm")
    prep(a, name, opt)
    return L, OB + 2 * NST, R.n

def k2(name, opt):
    L = []; a = L.append
    R = RA(1)
    vL, vT, vT2, vA, vK = R(), R(), R(), R(), R()
    tmp = R(8, 2); vW, vSt = R(), R(); X = R(16, 4); W = R(16, 4)
    BR, BI = R(16, 4), R(16, 4); AR, AI = R(16, 4), R(16, 4)
    C, S, NS = R(8, 4), R(8, 4), R(8, 4)
    TC, TS = R(16, 2), R(16, 2); UC, US = R(16, 2), R(16, 2)
    PR, PI = R(8, 4), R(8, 4); DR, DI = R(16, 4), R(16, 4)
    vG = R(4); vR0, vR1 = R(), R()
    RS = 272; CB = 32 * RS; XB = 4 * CB
    a(f"L_{name}:")
    stamp(a, opt, 0)
    a("s_cmp_ge_u32 s2, 256"); a(f"s_cbranch_scc1 L_{name}_end")
    a("s_load_dwordx2 s[6:7], s[0:1], 72")
    lane_wave(a, vL, vT)
    a(f"v_lshlrev_b32 v{vA}, 6, v{vL}"); a(f"v_lshlrev_b32 v{vT2}, 4, v{vL}")
    a(f"s_mul_i32 s30, s2, {ZS}"); a(f"s_lshl_b32 s31, s{sWave}, 4"); a("s_add_u32 s30, s30, s31")
    a(f"s_lshl_b32 s31, s2, 2"); a(f"s_add_u32 s31, s31, s{sWave}"); a("s_lshl_b32 s31, s31, 12")
    a("s_waitcnt lgkmcnt(0)")
    ws_srd(a, 8, "s3", 256 * ZS)
    for i in range(4):
        a(f"buffer_load_dwordx4 {vr(X+4*i,4)}, v{vA}, s[8:11], s30 offen")
        if i < 3: a("s_add_u32 s30, s30, 4096")
    ws_srd(a, 16, "s5", 4 * MB)
    for i in range(4): a(f"buffer_load_dwordx4 {vr(W+4*i,4)}, v{vT2}, s[16:19], s31 offen offset:{1024*i}")
    ws_srd(a, 12, "s4", 256 * ZS)
    a(f"s_and_b32 s32, s{sWave}, 1")
    a(f"v_and_b32 v{vT}, 31, v{vL}"); a(f"v_lshl_add_u32 v{vK}, v{vT}, 1, s32"); a(f"v_cvt_f32_u32 v{vK}, v{vK}")
    a(f"v_fma_f32 v{tmp}, v{vK}, 0.5, 0.5"); a(f"v_mul_f32 v{tmp}, 0.5, v{tmp}")
    a(f"v_cos_f32 v{tmp+1}, v{tmp}"); a(f"v_sin_f32 v{vG+2}, v{tmp}")
    a(f"v_mul_f32 v{tmp+2}, {fl(1/64)}, v{vK}")
    a(f"v_add_f32 v{vG}, 1.0, v{tmp+1}"); a(f"v_sub_f32 v{vG+1}, 1.0, v{tmp+1}")
    a(f"v_lshrrev_b32 v{vT}, 5, v{vL}"); a(f"v_cvt_f32_u32 v{vG+3}, v{vT}")
    a(f"v_mul_f32 v{tmp+3}, v{vG+3}, v{tmp+2}"); a(f"v_add_f32 v{tmp+3}, v{tmp+3}, v{tmp+3}")
    for i in range(4):
        for nu in range(2):
            m = 4 * i + nu
            if m: a(f"v_fmamk_f32 v{tmp}, v{tmp+2}, {fl(float(m))}, v{tmp+3}")
            src = tmp if m else tmp + 3
            a(f"v_cos_f32 v{tmp+4}, v{src}"); a(f"v_sin_f32 v{tmp+5}, v{src}")
            a(f"v_mul_f32 v{tmp+6}, v{tmp+4}, v{vG+2}"); a(f"v_mul_f32 v{tmp+7}, v{tmp+5}, v{vG+2}")
            a(f"v_fma_f32 v{DR}, v{tmp+4}, v{vG}, -v{tmp+7}")
            a(f"v_fma_f32 v{DR+1}, v{tmp+5}, v{vG}, v{tmp+6}")
            a(f"v_fma_f32 v{DR+2}, v{tmp+4}, v{vG+1}, v{tmp+7}")
            a(f"v_fma_f32 v{DR+3}, -v{tmp+5}, v{vG+1}, v{tmp+6}")
            a(f"v_cvt_pk_bf16_f32 v{BR+4*i+nu}, v{DR}, v{DR+1}"); a(f"v_cvt_pk_bf16_f32 v{BR+4*i+2+nu}, v{DR+2}, v{DR+3}")
            a(f"v_cvt_pk_bf16_f32 v{BI+4*i+nu}, -v{DR+1}, v{DR}"); a(f"v_cvt_pk_bf16_f32 v{BI+4*i+2+nu}, v{DR+3}, -v{DR+2}")
    a(f"s_mul_i32 s33, s{sWave}, {CB}")
    a(f"v_and_b32 v{vT2}, 31, v{vL}"); a(f"v_mul_u32_u24 v{vT2}, {RS}, v{vT2}"); a(f"v_lshl_add_u32 v{vT2}, v{vT}, 4, v{vT2}"); a(f"v_add_u32 v{vT2}, s33, v{vT2}")
    for i in range(4):
        a(f"ds_write_b128 v{vT2}, {vr(BR+4*i,4)} offset:{32*i}"); a(f"ds_write_b128 v{vT2}, {vr(BI+4*i,4)} offset:{128+32*i}")
    a(f"v_bfe_u32 v{vT2}, v{vL}, 2, 2"); a(f"v_lshl_add_u32 v{vT2}, v{vT}, 2, v{vT2}"); a(f"v_mul_u32_u24 v{vT2}, {RS}, v{vT2}")
    a(f"v_bfe_u32 v{tmp}, v{vL}, 4, 1"); a(f"v_lshl_add_u32 v{vT2}, v{tmp}, 5, v{vT2}")
    a(f"v_and_b32 v{tmp}, 1, v{vL}"); a(f"v_lshl_add_u32 v{vT2}, v{tmp}, 4, v{vT2}")
    a(f"v_bfe_u32 v{tmp}, v{vL}, 1, 1"); a(f"v_lshl_add_u32 v{vT2}, v{tmp}, 3, v{vT2}"); a(f"v_add_u32 v{vT2}, s33, v{vT2}")
    a(f"v_mul_f32 v{tmp+2}, {fl(1/2048)}, v{vK}"); a(f"v_mul_f32 v{tmp+3}, 4.0, v{vG+3}"); a(f"v_mul_f32 v{tmp+3}, v{tmp+3}, v{tmp+2}")
    sincos16(a, tmp + 2, tmp + 3, lambda r: rho(0, r), TC, TS, tmp)
    a("s_waitcnt lgkmcnt(0)")
    for part, A_ in ((0, AR), (1, AI)):
        for tile in range(2):
            for t2 in range(2):
                for jj in range(2):
                    a(f"ds_read_b64_tr_b16 {vr(A_+8*tile+4*t2+2*jj,2)}, v{vT2} offset:{(16*t2+8*jj)*RS + part*128 + tile*64}")
    f32consts(a, vL, C, S, NS, DR, tmp)
    a(f"v_mul_f32 v{tmp+2}, {fl(1/64)}, v{tmp+2}")
    a(f"v_lshl_add_u32 v{tmp+3}, v{vT}, 3, s32"); a(f"v_cvt_f32_u32 v{tmp+3}, v{tmp+3}"); a(f"v_mul_f32 v{tmp+3}, v{tmp+3}, v{tmp+2}")
    sincos16(a, tmp + 2, tmp + 3, lambda r: 2 * rho(0, r), UC, US, tmp)
    a(f"s_lshl_b32 s33, s{sWave}, 12"); a(f"s_add_u32 s33, s33, {XB}")
    a(f"v_lshl_add_u32 v{vW}, v{vL}, 4, s33")
    a(f"s_lshl_b32 s33, s{sWave}, 8"); a(f"s_add_u32 s33, s33, {XB}")
    a(f"v_lshl_add_u32 v{vR0}, v{vL}, 2, s33")
    a("s_cmp_eq_u32 s2, 0"); a("s_cselect_b32 s33, 8192, 0")
    a(f"v_bfe_u32 v{tmp}, v{vL}, 1, 1"); a(f"v_mul_u32_u24 v{tmp}, s33, v{tmp}")
    a(f"v_sub_u32 v{vR1}, v{vR0}, v{tmp}"); a(f"v_add_u32 v{vR1}, 8192, v{vR1}"); a(f"v_add_u32 v{vR0}, v{vR0}, v{tmp}")
    a(f"s_lshl_b32 s33, s{sWave}, 4")
    a(f"v_lshrrev_b32 v{tmp}, 2, v{vL}"); a(f"v_add_u32 v{tmp}, s33, v{tmp}")
    a(f"v_mul_u32_u24 v{vSt}, {ZS}, v{tmp}"); a(f"v_and_b32 v{tmp}, 3, v{vL}"); a(f"v_lshl_add_u32 v{vSt}, v{tmp}, 4, v{vSt}")
    a("s_lshl_b32 s42, s2, 6")
    for i in range(1, 4): a(f"s_add_u32 s{42+i}, s42, {i*64*ZS}")
    stamp(a, opt, 1)
    for i in range(4):
        a(f"s_waitcnt vmcnt({7-i})")
        mfma(a, DR, X + 4 * i, BR + 4 * i, i == 0); mfma(a, DI, X + 4 * i, BI + 4 * i, i == 0)
    stamp(a, opt, 2)
    cmul_pack(a, DR, DI, TC, TS, False, PR, PI, tmp)
    cstage(a, DR, DI, PR, PI, C, S, NS, True, False)
    a("s_waitcnt vmcnt(0)")
    for r in range(16):
        a(f"v_lshlrev_b32 v{TC+r}, 16, v{W+r}"); a(f"v_and_b32 v{TS+r}, 0xffff0000, v{W+r}")
    cmul_pack(a, DR, DI, TC, TS, True, PR, PI, tmp)
    cstage(a, DR, DI, PR, PI, C, S, NS, False, True)
    cmul_pack(a, DR, DI, UC, US, True, PR, PI, tmp)
    a("s_waitcnt lgkmcnt(0)")
    for t2 in range(2):
        for tile, D in ((0, DR), (1, DI)): mfma(a, D, AR + 8 * tile + 4 * t2, PR + 4 * t2, t2 == 0)
        for tile, D in ((0, DR), (1, DI)): mfma(a, D, AI + 8 * tile + 4 * t2, PI + 4 * t2, False)
    a(f"s_lshr_b32 s33, s{sWave}, 1"); a("s_or_b32 s33, s33, s2"); a("s_cmp_lg_u32 s33, 0")
    a("s_nop 9")
    a(f"s_cbranch_scc1 L_{name}_nofix")
    for D in (DR, DI):
        for r in (0, 1, 2, 3, 8, 9, 10, 11):
            a(f"v_add_f32 v{D+r+4}, v{D+r}, v{D+r+4}"); a(f"v_mul_f32 v{D+r+4}, 0.5, v{D+r+4}"); a(f"v_mov_b32 v{D+r}, 0")
    a(f"L_{name}_nofix:")
    for i in range(4):
        D = (DR, DI)[i >> 1] + 8 * (i & 1)
        for p in range(4): a(f"v_cvt_pk_bf16_f32 v{X+4*i+p}, v{D+2*p}, v{D+2*p+1}")
        a(f"ds_write_b128 v{vW}, {vr(X+4*i,4)} offset:{1024*i}")
    a("s_waitcnt lgkmcnt(0)"); a("s_barrier")
    for i in range(4):
        a(f"ds_read2st64_b32 {vr(X+4*i,2)}, v{vR0} offset0:{4*i} offset1:{4*i+16}")
        a(f"ds_read2st64_b32 {vr(X+4*i+2,2)}, v{vR1} offset0:{4*i} offset1:{4*i+16}")
    for i in range(4):
        a(f"s_waitcnt lgkmcnt({2*(3-i)})")
        a(f"buffer_store_dwordx4 {vr(X+4*i,4)}, v{vSt}, s[12:15], s{42+i} offen {opt.get('sf','sc1')}")
    stamp(a, opt, 3)
    stamp_out(a, opt, 4, opt.get("slot", 0), tmp)
    a(f"L_{name}_end:")
    a("s_endpgm")
    return L, XB + 16384, R.n

def k3(name, opt):
    L = []; a = L.append
    R = RA(1)
    vL, vT, vT2, vA, vA7, vX = R(), R(), R(), R(), R(), R()
    tmp = R(8, 2); V = R(32, 4); X = R(16, 4)
    BR, BI = R(32, 4), R(32, 4)
    C, S, NS = R(8, 4), R(8, 4), R(8, 4)
    TC, TS = R(16, 2), R(16, 2)
    PR, PI = R(8, 4), R(8, 4); DR, DI = R(16, 4), R(16, 4)
    vW, vRd, vSt = R(), R(), R()
    AS = 32 * 528
    a(f"L_{name}:")
    stamp(a, opt, 0)
    a("s_cmp_ge_u32 s2, 256"); a(f"s_cbranch_scc1 L_{name}_end")
    a("s_load_dwordx2 s[36:37], s[0:1], 0")
    a("s_load_dwordx2 s[6:7], s[0:1], 72")
    lane_wave(a, vL, vT)
    a(f"v_and_b32 v{vT2}, 31, v{vL}"); a(f"v_lshrrev_b32 v{vT}, 5, v{vL}")
    a(f"v_sub_u32 v{vA}, 32, v{vT2}"); a(f"v_cmp_eq_u32 vcc, 0, v{vT}")
    a(f"v_lshlrev_b32 v{vX}, 6, v{vT2}"); a(f"v_lshl_add_u32 v{vX}, v{vT}, 5, v{vX}")
    a(f"v_cndmask_b32 v{vA}, v{vA}, v{vT2}, vcc")
    a(f"v_add_u32 v{vA7}, 224, v{vA}"); a(f"v_and_b32 v{vA7}, 255, v{vA7}")
    a(f"v_lshlrev_b32 v{vA}, 6, v{vA}"); a(f"v_lshl_add_u32 v{vA}, v{vT}, 5, v{vA}")
    a(f"v_lshlrev_b32 v{vA7}, 6, v{vA7}"); a(f"v_lshl_add_u32 v{vA7}, v{vT}, 5, v{vA7}")
    a(f"s_lshr_b32 s32, s{sWave}, 1"); a(f"s_and_b32 s33, s{sWave}, 1")
    a(f"s_mul_i32 s30, s2, {ZS}"); a("s_lshl_b32 s31, s32, 4"); a("s_add_u32 s30, s30, s31")
    a("s_and_b32 s38, s2, 31"); a("s_lshr_b32 s31, s2, 5"); a("s_lshl_b32 s31, s31, 6"); a("s_add_u32 s38, s38, s31")
    a("s_lshl_b32 s31, s32, 5"); a("s_add_u32 s38, s38, s31"); a("s_lshl_b32 s31, s33, 10"); a("s_add_u32 s38, s38, s31")
    a("s_lshl_b32 s38, s38, 11"); a(f"s_add_u32 s39, s38, {MB}")
    a("s_waitcnt lgkmcnt(0)")
    ws_srd(a, 8, "s4", 256 * ZS)
    for i in range(7):
        if i and i % 2 == 0: a(f"s_add_u32 s31, s30, {2048*i}")
        a(f"buffer_load_dwordx4 {vr(V+4*i,4)}, v{vA}, s[8:11], s{30 if i < 2 else 31} offen offset:{2048*(i&1)}")
    a(f"buffer_load_dwordx4 {vr(V+28,4)}, v{vA7}, s[8:11], s30 offen")
    a("s_add_u32 s40, s6, s35"); a("s_addc_u32 s41, s7, 0")
    a("s_cmp_eq_u32 s3, 1"); a("s_cselect_b32 s16, s36, s40"); a("s_cselect_b32 s17, s37, s41")
    a("s_and_b32 s17, s17, 0xffff"); a(f"s_mov_b32 s18, {4*MB}"); a("s_mov_b32 s19, 0x20000")
    for q in range(2):
        for e in range(2): a(f"buffer_load_dwordx4 {vr(X+8*q+4*e,4)}, v{vX}, s[16:19], s{38+q} offen offset:{16*e}")
    ws_srd(a, 12, "s5", 4 * MB); ws_srd(a, 20, "s34", 4 * MB)
    a(f"v_bfe_u32 v{tmp}, v{vL}, 2, 1"); a(f"v_lshlrev_b32 v{tmp}, 4, v{tmp}")
    a(f"v_bfe_u32 v{tmp+1}, v{vL}, 3, 2"); a(f"v_lshl_add_u32 v{tmp}, v{tmp+1}, 2, v{tmp}")
    a(f"v_and_b32 v{tmp+1}, 3, v{vL}"); a(f"v_add_u32 v{tmp}, v{tmp}, v{tmp+1}")
    a(f"v_cvt_f32_u32 v{tmp+4}, v{tmp}"); a(f"v_mul_f32 v{tmp+4}, {fl(1/32)}, v{tmp+4}")
    a(f"v_cvt_f32_u32 v{tmp+5}, v{vT}")
    a(f"v_fma_f32 v{tmp+2}, v{tmp+5}, -2.0, 1.0"); a(f"v_mul_f32 v{tmp+2}, v{tmp+2}, v{tmp+4}")
    a(f"v_mul_f32 v{tmp+3}, v{tmp+5}, v{tmp+4}"); a(f"v_mul_f32 v{tmp+3}, {fl(31.0)}, v{tmp+3}")
    sincos16(a, tmp + 2, tmp + 3, lambda r: r, DR, DI, tmp)
    a("s_cmp_eq_u32 s33, 1"); a("s_cselect_b32 s31, 0x80008000, 0")
    for i in range(8):
        for js in range(2):
            x = i + 8 * js
            a(f"v_cvt_pk_bf16_f32 v{BR+4*i+2*js}, v{DR+x}, -v{DI+x}"); a(f"v_cvt_pk_bf16_f32 v{BI+4*i+2*js}, v{DI+x}, v{DR+x}")
            a(f"v_xor_b32 v{BR+4*i+2*js+1}, s31, v{BR+4*i+2*js}"); a(f"v_xor_b32 v{BI+4*i+2*js+1}, s31, v{BI+4*i+2*js}")
    a(f"v_mul_f32 v{tmp+2}, {fl(1/32)}, v{tmp+4}"); a(f"v_mul_f32 v{tmp+3}, 4.0, v{tmp+5}"); a(f"v_mul_f32 v{tmp+3}, v{tmp+3}, v{tmp+2}")
    sincos16(a, tmp + 2, tmp + 3, lambda r: rho(0, r), TC, TS, tmp)
    f32consts(a, vL, C, S, NS, DR, tmp)
    a("s_lshl_b32 s31, s32, 2"); a("s_add_u32 s31, s31, s33"); a("s_lshl_b32 s31, s31, 4")
    a(f"v_mul_u32_u24 v{vW}, 528, v{vT2}"); a(f"v_lshl_add_u32 v{vW}, v{vT}, 8, v{vW}"); a(f"v_add_u32 v{vW}, s31, v{vW}")
    a(f"s_mul_i32 s31, s{sWave}, 1056")
    a(f"v_mul_u32_u24 v{vRd}, 528, v{vT}"); a(f"v_lshl_add_u32 v{vRd}, v{vT2}, 4, v{vRd}"); a(f"v_add_u32 v{vRd}, s31, v{vRd}")
    a(f"v_lshrrev_b32 v{vSt}, 3, v{vL}"); a(f"v_lshlrev_b32 v{vSt}, 8, v{vSt}"); a(f"v_and_b32 v{tmp}, 7, v{vL}"); a(f"v_lshl_add_u32 v{vSt}, v{tmp}, 4, v{vSt}")
    a("s_lshr_b32 s42, s2, 1"); a("s_lshl_b32 s42, s42, 15"); a("s_and_b32 s31, s2, 1"); a("s_lshl_b32 s31, s31, 7"); a("s_add_u32 s42, s42, s31")
    a(f"s_lshl_b32 s31, s{sWave}, 11"); a("s_add_u32 s42, s42, s31")
    for i in range(1, 4): a(f"s_add_u32 s{42+i}, s42, {i*8192}")
    stamp(a, opt, 1)
    for i in range(8):
        a(f"s_waitcnt vmcnt({11-i})")
        mfma(a, DR, V + 4 * i, BR + 4 * i, i == 0); mfma(a, DI, V + 4 * i, BI + 4 * i, i == 0)
    stamp(a, opt, 2)
    cmul_pack(a, DR, DI, TC, TS, True, PR, PI, tmp)
    cstage(a, DR, DI, PR, PI, C, S, NS, False, True)
    a("s_waitcnt vmcnt(0)")
    for p in range(16):
        a(f"v_lshlrev_b32 v{V+2*p}, 16, v{X+p}"); a(f"v_and_b32 v{V+2*p+1}, 0xffff0000, v{X+p}")
    a(f"v_mov_b32 v{tmp+4}, {fl(2.0**-22)}")
    for q, D in ((0, DR), (1, DI)):
        for p in range(8):
            a(f"v_pk_fma_f32 {vr(D+2*p,2)}, {vr(D+2*p,2)}, {vr(tmp+4,2)}, {vr(V+16*q+2*p,2)} op_sel_hi:[1,0,1]")
            a(f"v_cvt_pk_bf16_f32 v{X+8*q+p}, v{D+2*p}, v{D+2*p+1}")
            if p == 0:
                a(f"v_pk_mul_f32 {vr(BR+4*q+2,2)}, {vr(D,2)}, {vr(D,2)}")
            else:
                a(f"v_pk_add_f32 {vr(BR+4*q,2)}, {vr(D if p == 1 else BR+4*q,2)}, {vr(D+2*p,2)}")
                a(f"v_pk_fma_f32 {vr(BR+4*q+2,2)}, {vr(D+2*p,2)}, {vr(D+2*p,2)}, {vr(BR+4*q+2,2)}")
        for e in range(2): a(f"ds_write_b128 v{vW}, {vr(X+8*q+4*e,4)} offset:{128*e + 32*q}")
    for k in range(4): a(f"v_add_f32 v{tmp+k}, v{BR+2*k}, v{BR+2*k+1}")
    reduce4(a, tmp, tmp + 1, tmp + 2, tmp + 3, 46)
    ln_coef(a, 46, 47, tmp, tmp + 2); ln_coef(a, 48, 49, tmp + 4, tmp + 6)
    for q, D in ((0, DR), (1, DI)):
        for p in range(8):
            a(f"v_pk_fma_f32 {vr(D+2*p,2)}, {vr(D+2*p,2)}, {vr(tmp+4*q+2,2)}, {vr(tmp+4*q,2)} op_sel_hi:[1,0,0]")
            a(f"v_cvt_pk_bf16_f32 v{V+8*q+p}, v{D+2*p}, v{D+2*p+1}")
        for e in range(2): a(f"ds_write_b128 v{vW}, {vr(V+8*q+4*e,4)} offset:{AS + 128*e + 32*q}")
    a("s_waitcnt lgkmcnt(0)"); a("s_barrier")
    for arr in (1, 0):
        for i in range(4): a(f"ds_read_b128 {vr(BR+16*arr+4*i,4)}, v{vRd} offset:{arr*AS + i*8*528}")
    n = 7
    for arr in (1, 0):
        for i in range(4):
            a(f"s_waitcnt lgkmcnt({n})"); n -= 1
            a(f"buffer_store_dwordx4 {vr(BR+16*arr+4*i,4)}, v{vSt}, s[{20 if arr else 12}:{23 if arr else 15}], s{42+i} offen {opt.get('sf','sc1')}")
    stamp(a, opt, 3)
    stamp_out(a, opt, 4, opt.get("slot", 0), tmp)
    a(f"L_{name}_end:")
    a("s_endpgm")
    return L, 2 * AS, R.n
```

```python
from common import *

MB = 1 << 20
WS = {}
_o = 0
for _n, _sz in (("Z1", 5), ("V1", 5), ("X1", 4), ("XN1", 4), ("H1", 15), ("X2", 4), ("Z2", 5), ("V2", 5), ("X3", 4), ("XN2", 4), ("H2", 15),
                ("WT", 4), ("P1", 16), ("P2", 16)):
    WS[_n] = _o * MB; _o += _sz

S_A, S_B, S_O, S_R = 8, 12, 16, 20
sAoff, sBoff, sM0, sBuf, sLoop, sWave, sT0, sT1, sMT, sNT, sRd = 24, 25, 26, 27, 28, 29, 30, 31, 32, 33, 34

class G:
    def __init__(self, **kw):
        self.__dict__.update(kw)

def core(c, a):
    MF, NT, KS, T, DA, NA, NB, PD, RING = c.MF, c.NT, c.KS, c.T, c.DA, c.NA, c.NB, c.PD, c.RING
    DB = NB - 2
    ASZ = MF * KS * 4
    AB, BB = 0, NA * ASZ
    assert BB + RING * KS * 4 <= 256
    def areg(t, i, ks): r = AB + (t % NA) * ASZ + (i * KS + ks) * 4; return f"a[{r}:{r+3}]"
    def bslot(t, j): return BB + ((t * NT + j) % RING) * KS * 4
    def aloads(t):
        L = []
        for ks in range(KS):
            for i in range(MF):
                L.append([Op(f"buffer_load_dwordx4 {areg(t,i,ks)}, v{c.vA+i}, s[{S_A}:{S_A+3}], s{sAoff} offen offset:{ks*1024}", "vm", ("A", t))])
        L[-1].append(Op(f"s_add_u32 s{sAoff}, s{sAoff}, {KS*1024}"))
        return L
    def bdma(t):
        L = []
        for q in range(c.NDMA):
            grp = []
            if q % 4 == 0:
                grp.append(Op(f"s_add_u32 m0, s{sM0}, {(q//4)*4*c.DSTR}"))
                L.append(grp); grp = []
            grp.append(Op(f"buffer_load_dwordx4 v{c.vD+q}, s[{S_B}:{S_B+3}], s{sBoff} offen offset:{(q%4)*c.DSTR} lds", "vm", ("B", t)))
            L.append(grp)
        L.append([Op(f"s_add_u32 s{sBoff}, s{sBoff}, {c.BADV}")])
        L.append([Op(f"s_add_u32 s{sM0}, s{sM0}, {c.BST}")])
        L.append([Op(f"s_cmp_ge_u32 s{sM0}, {NB*c.BST}"), Op(f"s_cselect_b32 s{sT0}, {NB*c.BST}, 0")])
        L.append([Op(f"s_sub_u32 s{sM0}, s{sM0}, s{sT0}")])
        return L
    def reads(t, j):
        L = []
        for ks in range(KS):
            for hf in range(2):
                r = bslot(t, j) + ks * 4 + hf * 2
                L.append(Op(f"ds_read_b64_tr_b16 a[{r}:{r+1}], v{c.vR} offset:{c.roff(j, ks, hf)}", "ds", ("R", t, j)))
        return L
    def rd_advance():
        return [Op(f"s_add_u32 s{sRd}, s{sRd}, {c.BST}"), Op(f"s_cmp_ge_u32 s{sRd}, {NB*c.BST}"), Op(f"s_cselect_b32 s{sRd}, 0, s{sRd}")]
    pro = []
    for t in range(max(DA, DB)):
        if t < DB and t < T:
            for g in bdma(t):
                pro += g
                if g[0].text.startswith("s_add_u32 m0"): pro.append(Op("s_nop 0"))
        if t < DA and t < T:
            for g in aloads(t): pro += g
    for r in range(4 * MF * NT): pro.append(Op(f"v_mov_b32 v{r}, 0"))
    pro += c.pro_extra()
    pro.append(Op("", "wvm", ("B", 0)))
    pro.append(Op("s_barrier"))
    for j in range(PD): pro += reads(0, j)
    stages = []
    NM = MF * KS
    for t in range(T):
        fill = {}
        pre = {}
        def add(d, idx, ops): d.setdefault(idx, []).extend(ops)
        add(pre, 0, [Op("", "wvm", ("A", t))])
        for j in range(NT):
            add(pre, j * NM, [Op("", "wds", ("R", t, j))])
            tt, jj = (t, j + PD) if j + PD < NT else (t + 1, j + PD - NT)
            if tt < T:
                rr = reads(tt, jj)
                first = 0
                if tt > t and jj == 0:
                    add(fill, j * NM - 3, rd_advance()[:1]); add(fill, j * NM - 2, rd_advance()[1:])
                    add(fill, j * NM - 1, [Op(f"v_add_u32 v{c.vR}, s{sRd}, v{c.vR0}")])
                    add(fill, j * NM, [Op("", "wvm", ("B", tt)), Op("s_barrier")])
                for n, r in enumerate(rr):
                    add(fill, j * NM + (n * NM) // len(rr), [r])
        groups = []
        if t + DA < T: groups += aloads(t + DA)
        if t + DB < T: groups += bdma(t + DB)
        lim = NT * NM - 4
        span = int(lim * c.SPAN)
        for n, g in enumerate(groups):
            idx = 1 + (n * span) // max(len(groups), 1)
            if c.MF >= 4: idx |= 1
            add(fill, min(idx, lim), g)
        st = []
        m = 0
        for j in range(NT):
            order = range(MF) if j % 2 == 0 else range(MF - 1, -1, -1)
            for i in order:
                for ks in range(KS):
                    st += pre.get(m, [])
                    d = 4 * (j * MF + i)
                    b = bslot(t, j) + ks * 4
                    st.append(Op(f"v_mfma_f32_16x16x32_bf16 v[{d}:{d+3}], a[{b}:{b+3}], {areg(t,i,ks)}, v[{d}:{d+3}]", "mfma"))
                    st += fill.get(m, [])
                    m += 1
        fixed = []
        for o in st:
            if fixed and fixed[-1].text.startswith("s_add_u32 m0") and o.text.endswith("lds"): fixed.append(Op("s_nop 0"))
            fixed.append(o)
        stages.append(fixed)
    flat = pro + [o for st in stages for o in st]
    resolve_waits(flat)
    for o in pro: a(o.text)
    if c.opt.get("stamp"): stamp(a, c.opt, 1); a("s_waitcnt lgkmcnt(0)")
    import math
    P = NA * (RING // math.gcd(RING, NT)) // math.gcd(NA, RING // math.gcd(RING, NT))
    for l in fold_loop([[o.text for o in st] for st in stages], P, f"L_{c.name}_loop", f"s{sLoop}"): a(l)

def wave_id(a):
    a(f"v_lshrrev_b32 v1, 6, v0")
    a("s_nop 0")
    a(f"v_readfirstlane_b32 s{sWave}, v1")

def gemm1(name, opt):
    L = []; a = L.append
    c = G(name=name, MF=4, NT=14, KS=2, T=16, DA=opt.get("DA", 1), NA=opt.get("NA", 2), NB=opt.get("NB", 4), PD=opt.get("PD", 2), RING=opt.get("RING", 7),
          NDMA=7, DSTR=1024, BST=28672, BADV=64 * 7168, SPAN=opt.get("SPAN", 1.0),
          vA=224, vD=228, vR=235, vR0=236)
    vL, vT, vT2, vS = 237, 238, 239, 240
    c.roff = lambda j, ks, hf: (j & 1) * 14336 + (32 * ks + 8 * hf) * 224 + (j >> 1) * 32
    a(f"L_{name}:")
    stamp(a, opt, 0)
    c.opt = opt
    a("s_cmp_ge_u32 s2, 256")
    a(f"s_cbranch_scc1 L_{name}_end")
    a("s_load_dwordx4 s[36:39], s[0:1], 32")
    a("s_load_dwordx2 s[6:7], s[0:1], 72")
    wave_id(a)
    a(f"v_and_b32 v{vL}, 63, v0")
    a(f"s_and_b32 s{sT0}, s2, 7"); a(f"s_lshr_b32 s{sT1}, s2, 3")
    if opt.get("map", "4x8") == "4x8":
        a(f"s_and_b32 s{sMT}, s{sT0}, 1"); a(f"s_lshl_b32 s{sMT}, s{sMT}, 2"); a(f"s_and_b32 s{sNT}, s{sT1}, 3"); a(f"s_add_u32 s{sMT}, s{sMT}, s{sNT}")
        a(f"s_lshr_b32 s{sNT}, s{sT0}, 1"); a(f"s_lshl_b32 s{sNT}, s{sNT}, 3"); a(f"s_lshr_b32 s{sT1}, s{sT1}, 2"); a(f"s_add_u32 s{sNT}, s{sNT}, s{sT1}")
    else:
        a(f"s_and_b32 s{sMT}, s{sT1}, 7"); a(f"s_lshl_b32 s{sNT}, s{sT0}, 2"); a(f"s_lshr_b32 s{sT1}, s{sT1}, 3"); a(f"s_add_u32 s{sNT}, s{sNT}, s{sT1}")
    a(f"v_lshlrev_b32 v{vT}, 4, v{vL}")
    a(f"s_lshl_b32 s{sT0}, s{sWave}, 17")
    a(f"v_add_u32 v{c.vA}, s{sT0}, v{vT}")
    for i in range(1, 4): a(f"v_add_u32 v{c.vA+i}, {i*32768}, v{c.vA}")
    a(f"s_lshl_b32 s{sAoff}, s{sMT}, 19")
    a(f"s_and_b32 s{sT0}, s{sWave}, 1"); a(f"s_mul_i32 s{sT0}, s{sT0}, 448")
    a(f"s_movk_i32 s{sT1}, 4682")
    a(f"s_mul_i32 s{sBoff}, s{sNT}, 224")
    for q in range(7):
        d = c.vD + q
        a(f"v_add_u32 v{vT}, s{sT0}, v{vL}")
        if q: a(f"v_add_u32 v{vT}, {q*64}, v{vT}")
        a(f"v_mul_u32_u24 v{vT2}, s{sT1}, v{vT}")
        a(f"v_lshrrev_b32 v{vT2}, 16, v{vT2}")
        a(f"v_mul_u32_u24 v{d}, 14, v{vT2}")
        a(f"v_sub_u32 v{vT}, v{vT}, v{d}")
        a(f"v_and_b32 v{d}, 0x33, v{vT2}")
        a(f"v_and_b32 v{vS}, 4, v{vT2}"); a(f"v_lshl_add_u32 v{d}, v{vS}, 1, v{d}")
        a(f"v_and_b32 v{vS}, 8, v{vT2}"); a(f"v_lshrrev_b32 v{vS}, 1, v{vS}"); a(f"v_add_u32 v{d}, v{d}, v{vS}")
        a(f"v_mul_u32_u24 v{d}, 7168, v{d}")
        a(f"v_lshl_add_u32 v{d}, v{vT}, 4, v{d}")
        if q % 4: a(f"v_subrev_u32 v{d}, {(q%4)*1024}, v{d}")
    a(f"s_mul_i32 s{sM0}, s{sWave}, 7168")
    a(f"v_lshrrev_b32 v{vT}, 5, v{vL}"); a(f"v_lshlrev_b32 v{vT}, 4, v{vT}")
    a(f"v_bfe_u32 v{vT2}, v{vL}, 2, 3"); a(f"v_add_u32 v{vT}, v{vT}, v{vT2}")
    a(f"v_mul_u32_u24 v{vT}, 224, v{vT}")
    a(f"v_and_b32 v{vT2}, 3, v{vL}"); a(f"v_lshl_add_u32 v{c.vR0}, v{vT2}, 3, v{vT}")
    a(f"v_mov_b32 v{c.vR}, v{c.vR0}")
    a(f"s_mov_b32 s{sRd}, 0")
    a("s_waitcnt lgkmcnt(0)")
    a(f"s_add_u32 s{S_A}, s6, s4"); a(f"s_addc_u32 s{S_A+1}, s7, 0"); a(f"s_and_b32 s{S_A+1}, s{S_A+1}, 0xffff"); a(f"s_mov_b32 s{S_A+2}, {4*MB}"); a(f"s_mov_b32 s{S_A+3}, 0x20000")
    a(f"s_add_u32 s{S_O}, s6, s5"); a(f"s_addc_u32 s{S_O+1}, s7, 0"); a(f"s_and_b32 s{S_O+1}, s{S_O+1}, 0xffff"); a(f"s_mov_b32 s{S_O+2}, {2048*3584*2}"); a(f"s_mov_b32 s{S_O+3}, 0x20000")
    a(f"s_cmp_ge_u32 s{sWave}, 2")
    a(f"s_cselect_b32 s{S_B}, s38, s36"); a(f"s_cselect_b32 s{S_B+1}, s39, s37"); a(f"s_and_b32 s{S_B+1}, s{S_B+1}, 0xffff"); a(f"s_mov_b32 s{S_B+2}, {1024*7168}"); a(f"s_mov_b32 s{S_B+3}, 0x20000")
    def pro_extra():
        P = []
        P.append(Op(f"v_bfe_u32 v{vT}, v{vL}, 4, 1")); P.append(Op(f"v_mul_u32_u24 v{vT}, 114688, v{vT}"))
        P.append(Op(f"v_lshrrev_b32 v{vT2}, 5, v{vL}")); P.append(Op(f"v_lshl_add_u32 v{vT}, v{vT2}, 8, v{vT}"))
        P.append(Op(f"v_and_b32 v{vT2}, 15, v{vL}")); P.append(Op(f"v_lshl_add_u32 v{vS}, v{vT2}, 4, v{vT}"))
        P.append(Op(f"v_add_u32 v{vS+1}, {2*114688}, v{vS}"))
        return P
    c.pro_extra = pro_extra
    core(c, a)
    stamp(a, opt, 2)
    a(f"s_lshl_b32 s{sT0}, s{sMT}, 2"); a(f"s_add_u32 s{sT0}, s{sT0}, s{sWave}"); a(f"s_mul_i32 s{sT0}, s{sT0}, {4*114688}")
    a(f"s_mul_i32 s{sT1}, s{sNT}, {14*256}"); a(f"s_add_u32 s{sT0}, s{sT0}, s{sT1}")
    a("s_nop 7")
    sf = opt.get("sf", "sc1")
    for j in range(7):
        for ip in range(2):
            g0 = 4 * ((2 * j) * 4 + 2 * ip); u0 = 4 * ((2 * j + 1) * 4 + 2 * ip)
            for r in range(0, 8, 2): a(f"v_pk_mul_f32 v[{g0+r}:{g0+r+1}], v[{g0+r}:{g0+r+1}], v[{u0+r}:{u0+r+1}]")
            for r in range(4): a(f"v_cvt_pk_bf16_f32 v{u0+r}, v{g0+2*r}, v{g0+2*r+1}")
            a("s_nop 1")
            a(f"v_permlane16_swap_b32 v{u0}, v{u0+2}"); a(f"v_permlane16_swap_b32 v{u0+1}, v{u0+3}")
            a(f"buffer_store_dwordx4 v[{u0}:{u0+3}], v{vS+ip}, s[{S_O}:{S_O+3}], s{sT0} offen offset:{j*512} {sf}")
    stamp_out(a, opt, 3, opt.get("slot", 0), vT)
    a(f"L_{name}_end:")
    a("s_endpgm")
    return L, c.NB * c.BST

def gemm2(name, opt):
    L = []; a = L.append
    SK = opt.get("SK", 1)
    MF, NT, KS = {1: (2, 4, 4), 2: (2, 8, opt.get("KS", 2)), 4: (4, 8, 2)}[SK]
    T = 3584 // SK // (32 * KS)
    RB = NT * 32; RPI = 1024 // RB; LPR = RB // 16
    NDMA = KS * NT // 4
    nacc = 4 * MF * NT
    c = G(name=name, MF=MF, NT=NT, KS=KS, T=T, DA=opt.get("DA", 2), NA=opt.get("NA", 3), NB=opt.get("NB", 4), PD=opt.get("PD", 2), RING=opt.get("RING", 4),
          NDMA=NDMA, DSTR=1056, BST=KS * NT * 1056, BADV=32 * KS * 2048, SPAN=opt.get("SPAN", 1.0),
          vA=nacc, vD=nacc + 4, vR=nacc + 12, vR0=nacc + 13, opt=opt)
    vL, vT, vT2, vS, vX = nacc + 14, nacc + 15, nacc + 16, nacc + 18, nacc + 24
    c.roff = lambda j, ks, hf: ((ks * 4) // RPI) * 8 * 1056 + ((ks * 4) % RPI + hf) * RB + j * 32
    sKH = 42
    a(f"L_{name}:")
    stamp(a, opt, 0)
    a("s_cmp_ge_u32 s2, 256")
    a(f"s_cbranch_scc1 L_{name}_end")
    a("s_load_dwordx4 s[36:39], s[0:1], 48")
    a("s_load_dwordx2 s[6:7], s[0:1], 72")
    wave_id(a)
    a(f"v_and_b32 v{vL}, 63, v0")
    a(f"s_and_b32 s{sT0}, s2, 7"); a(f"s_lshr_b32 s{sT1}, s2, 3")
    if SK == 1:
        if opt.get("map", "4x8") == "4x8":
            a(f"s_lshr_b32 s{sMT}, s{sT0}, 1"); a(f"s_lshl_b32 s{sMT}, s{sMT}, 2"); a(f"s_and_b32 s{sNT}, s{sT1}, 3"); a(f"s_add_u32 s{sMT}, s{sMT}, s{sNT}")
            a(f"s_and_b32 s{sNT}, s{sT0}, 1"); a(f"s_lshl_b32 s{sNT}, s{sNT}, 3"); a(f"s_lshr_b32 s{sT1}, s{sT1}, 2"); a(f"s_add_u32 s{sNT}, s{sNT}, s{sT1}")
        else:
            a(f"s_lshl_b32 s{sMT}, s{sT0}, 1"); a(f"s_and_b32 s{sNT}, s{sT1}, 1"); a(f"s_add_u32 s{sMT}, s{sMT}, s{sNT}")
            a(f"s_lshr_b32 s{sNT}, s{sT1}, 1")
        a(f"s_mov_b32 s{sKH}, 0")
    elif SK == 2:
        a(f"s_and_b32 s{sKH}, s{sT0}, 1")
        a(f"s_lshr_b32 s{sMT}, s{sT0}, 1"); a(f"s_lshl_b32 s{sMT}, s{sMT}, 2"); a(f"s_and_b32 s{sNT}, s{sT1}, 3"); a(f"s_add_u32 s{sMT}, s{sMT}, s{sNT}")
        a(f"s_lshr_b32 s{sNT}, s{sT1}, 2")
    else:
        a(f"s_and_b32 s{sKH}, s{sT0}, 3")
        a(f"s_lshr_b32 s{sMT}, s{sT0}, 2"); a(f"s_lshl_b32 s{sMT}, s{sMT}, 2"); a(f"s_and_b32 s{sNT}, s{sT1}, 3"); a(f"s_add_u32 s{sMT}, s{sMT}, s{sNT}")
        a(f"s_lshr_b32 s{sNT}, s{sT1}, 2")
    a(f"v_lshlrev_b32 v{vT}, 4, v{vL}")
    a(f"s_mul_i32 s{sT0}, s{sWave}, {MF*114688}")
    a(f"v_add_u32 v{c.vA}, s{sT0}, v{vT}")
    for i in range(1, MF): a(f"v_add_u32 v{c.vA+i}, {i*114688}, v{c.vA}")
    a(f"s_mul_i32 s{sAoff}, s{sMT}, {4*MF*114688}")
    a(f"s_mul_i32 s{sT0}, s{sKH}, {3584//SK*32}"); a(f"s_add_u32 s{sAoff}, s{sAoff}, s{sT0}")
    a(f"s_mul_i32 s{sBoff}, s{sNT}, {RB}")
    a(f"s_mul_i32 s{sT0}, s{sKH}, {3584//SK*2048}"); a(f"s_add_u32 s{sBoff}, s{sBoff}, s{sT0}")
    lg = LPR.bit_length() - 1
    a(f"v_lshrrev_b32 v{vT}, {lg+1}, v{vL}"); a(f"v_lshlrev_b32 v{vT}, 4, v{vT}")
    a(f"v_bfe_u32 v{vT2}, v{vL}, {lg}, 1"); a(f"v_lshl_add_u32 v{vT}, v{vT2}, 2, v{vT}")
    a(f"v_lshlrev_b32 v{vT}, 11, v{vT}")
    a(f"v_and_b32 v{vT2}, {LPR-1}, v{vL}"); a(f"v_lshl_add_u32 v{vT}, v{vT2}, 4, v{vT}")
    if NDMA == 4:
        a(f"s_lshr_b32 s{sT0}, s{sWave}, 1"); a(f"s_mul_i32 s{sT0}, s{sT0}, {8*RPI*2048}")
        a(f"s_and_b32 s{sT1}, s{sWave}, 1"); a(f"s_mul_i32 s{sT1}, s{sT1}, {8*2048}"); a(f"s_add_u32 s{sT0}, s{sT0}, s{sT1}")
    else:
        assert NDMA == 8
        a(f"s_mul_i32 s{sT0}, s{sWave}, {8*RPI*2048}")
    a(f"v_add_u32 v{c.vD}, s{sT0}, v{vT}")
    for q in range(1, NDMA): a(f"v_add_u32 v{c.vD+q}, {(8*(q>>2)+(q&3))*2048 - (q%4)*1056}, v{c.vD}")
    a(f"s_mul_i32 s{sM0}, s{sWave}, {NDMA*1056}")
    a(f"v_bfe_u32 v{vT}, v{vL}, 2, 3"); a(f"v_mul_u32_u24 v{vT}, 1056, v{vT}")
    a(f"v_lshrrev_b32 v{vT2}, 5, v{vL}"); a(f"v_mul_u32_u24 v{vT2}, {2*RB}, v{vT2}"); a(f"v_add_u32 v{vT}, v{vT}, v{vT2}")
    a(f"v_and_b32 v{vT2}, 3, v{vL}"); a(f"v_lshl_add_u32 v{c.vR0}, v{vT2}, 3, v{vT}")
    a(f"v_mov_b32 v{c.vR}, v{c.vR0}")
    a(f"s_mov_b32 s{sRd}, 0")
    a("s_waitcnt lgkmcnt(0)")
    a(f"s_add_u32 s{S_A}, s6, s4"); a(f"s_addc_u32 s{S_A+1}, s7, 0"); a(f"s_and_b32 s{S_A+1}, s{S_A+1}, 0xffff"); a(f"s_mov_b32 s{S_A+2}, {2048*3584*2}"); a(f"s_mov_b32 s{S_A+3}, 0x20000")
    a(f"s_add_u32 s{S_R}, s6, s5"); a(f"s_addc_u32 s{S_R+1}, s7, 0"); a(f"s_and_b32 s{S_R+1}, s{S_R+1}, 0xffff"); a(f"s_mov_b32 s{S_R+2}, {4*MB}"); a(f"s_mov_b32 s{S_R+3}, 0x20000")
    srd(a, S_B, "s36", "s37", 3584 * 2048)
    a(f"s_mul_i32 s{sT0}, s{sKH}, {4*MB}"); a(f"s_add_u32 s35, s35, s{sT0}")
    a(f"s_add_u32 s40, s6, s35"); a(f"s_addc_u32 s41, s7, 0")
    a("s_cmp_eq_u32 s3, 1")
    a(f"s_cselect_b32 s{S_O}, s38, s40"); a(f"s_cselect_b32 s{S_O+1}, s39, s41"); a(f"s_and_b32 s{S_O+1}, s{S_O+1}, 0xffff"); a(f"s_mov_b32 s{S_O+2}, {4*MB}"); a(f"s_mov_b32 s{S_O+3}, 0x20000")
    def pro_extra():
        P = []
        def p(t, k="x", tag=None): P.append(Op(t, k, tag))
        p(f"s_lshl_b32 s{sT0}, s{sMT}, 2"); p(f"s_add_u32 s{sT0}, s{sT0}, s{sWave}"); p(f"s_mul_i32 s{sT0}, s{sT0}, {MF*2}")
        p(f"s_lshr_b32 s{sT1}, s{sT0}, 5"); p(f"s_lshl_b32 s{sT1}, s{sT1}, 6"); p(f"s_and_b32 s43, s{sT0}, 31"); p(f"s_add_u32 s{sT1}, s{sT1}, s43")
        p(f"s_lshl_b32 s{sT1}, s{sT1}, 11"); p(f"s_mul_i32 s43, s{sNT}, {RB}"); p(f"s_add_u32 s43, s43, s{sT1}")
        p(f"v_bfe_u32 v{vT}, v{vL}, 3, 1")
        p(f"v_bfe_u32 v{vT2}, v{vL}, 2, 1"); p(f"v_lshl_add_u32 v{vT}, v{vT2}, 5, v{vT}")
        p(f"v_bfe_u32 v{vT2}, v{vL}, 1, 1"); p(f"v_lshl_add_u32 v{vT}, v{vT2}, 9, v{vT}")
        p(f"v_and_b32 v{vT2}, 1, v{vL}"); p(f"v_lshl_add_u32 v{vT}, v{vT2}, 10, v{vT}")
        p(f"v_lshlrev_b32 v{vT}, 11, v{vT}")
        p(f"v_bfe_u32 v{vT2}, v{vL}, 4, 1"); p(f"v_lshl_add_u32 v{vT}, v{vT2}, 5, v{vT}")
        p(f"v_lshrrev_b32 v{vT2}, 5, v{vL}"); p(f"v_lshl_add_u32 v{vS}, v{vT2}, 4, v{vT}")
        for i in range(1, MF): p(f"v_add_u32 v{vS+i}, {i*2*2048}, v{vS}")
        if SK == 1:
            p(f"s_mul_i32 s{sT0}, s{sT0}, 16384"); p(f"s_mul_i32 s{sT1}, s{sNT}, {NT*2*256}"); p(f"s_add_u32 s{sT0}, s{sT0}, s{sT1}")
            p(f"v_bfe_u32 v{vT}, v{vL}, 4, 1"); p(f"v_lshlrev_b32 v{vT}, 9, v{vT}")
            p(f"v_lshrrev_b32 v{vT2}, 5, v{vL}"); p(f"v_lshl_add_u32 v{vT}, v{vT2}, 8, v{vT}")
            p(f"v_and_b32 v{vT2}, 15, v{vL}"); p(f"v_lshl_add_u32 v{vT}, v{vT2}, 4, v{vT}")
            p(f"v_add_u32 v{vT2}, 32768, v{vT}")
            for i in range(MF):
                for jp in range(NT // 2):
                    r = vX + 4 * (i * (NT // 2) + jp)
                    p(f"buffer_load_dwordx4 v[{r}:{r+3}], v{vT+i}, s[{S_R}:{S_R+3}], s{sT0} offen offset:{jp*1024}", "vm", "X")
        return P
    c.pro_extra = pro_extra
    core(c, a)
    stamp(a, opt, 2)
    sf = opt.get("sf", "sc1")
    a("s_nop 7")
    for i in range(MF):
        for jp in range(NT // 2):
            x0 = 4 * ((2 * jp) * MF + i); y0 = 4 * ((2 * jp + 1) * MF + i)
            if SK == 1:
                r = vX + 4 * (i * (NT // 2) + jp)
                a(f"v_permlane16_swap_b32 v{r}, v{r+2}"); a(f"v_permlane16_swap_b32 v{r+1}, v{r+3}")
                for n, d in enumerate((x0, x0 + 2, y0, y0 + 2)):
                    a(f"v_lshlrev_b32 v{vT2}, 16, v{r+n}"); a(f"v_and_b32 v{vT2+1}, 0xffff0000, v{r+n}")
                    a(f"v_pk_add_f32 v[{d}:{d+1}], v[{d}:{d+1}], v[{vT2}:{vT2+1}]")
            a(f"v_cvt_pk_bf16_f32 v{x0}, v{x0}, v{x0+1}"); a(f"v_cvt_pk_bf16_f32 v{x0+1}, v{x0+2}, v{x0+3}")
            a(f"v_cvt_pk_bf16_f32 v{x0+2}, v{y0}, v{y0+1}"); a(f"v_cvt_pk_bf16_f32 v{x0+3}, v{y0+2}, v{y0+3}")
            a("s_nop 1")
            a(f"v_permlane16_swap_b32 v{x0}, v{x0+2}"); a(f"v_permlane16_swap_b32 v{x0+1}, v{x0+3}")
            a(f"buffer_store_dwordx4 v[{x0}:{x0+3}], v{vS+i}, s[{S_O}:{S_O+3}], s43 offen offset:{jp*64} {sf}")
    stamp_out(a, opt, 3, opt.get("slot", 0), vT)
    a(f"L_{name}_end:")
    a("s_endpgm")
    return L, c.NB * c.BST
```

```python
import re
TRANS = ("v_sin_f32", "v_cos_f32", "v_rcp_f32", "v_rsq_f32", "v_sqrt_f32", "v_exp_f32", "v_log_f32")
_reg = re.compile(r"^-?(?:abs\()?([vas])(?:(\d+)|\[(\d+):(\d+)\])\)?$")
def regs(tok):
    tok = tok.strip()
    if tok in ("vcc",): return {("s", 106), ("s", 107)}
    if tok == "vcc_lo": return {("s", 106)}
    if tok == "m0": return {("s", 124)}
    if tok == "exec": return {("s", 126), ("s", 127)}
    m = _reg.match(tok)
    if not m: return set()
    k = m.group(1)
    if m.group(2) is not None: return {(k, int(m.group(2)))}
    return {(k, i) for i in range(int(m.group(3)), int(m.group(4)) + 1)}
class I:
    def __init__(self, text):
        self.text = text
        t = text.split(";")[0].strip()
        self.label = t.endswith(":") or t == "" or t.startswith(".")
        self.mn = t.split()[0] if t else ""
        rest = t[len(self.mn):].strip()
        ops = []
        depth = 0; cur = ""
        for ch in rest:
            if ch == "[": depth += 1
            if ch == "]": depth -= 1
            if ch == "," and depth == 0: ops.append(cur); cur = ""
            else: cur += ch
        if cur.strip(): ops.append(cur)
        self.mods = ""
        if ops:
            last = ops[-1].strip().split(None, 1)
            ops[-1] = last[0]
            if len(last) > 1: self.mods = last[1]
        self.ops = [o.strip() for o in ops]
        mn = self.mn
        self.cls = "other"
        self.w = set(); self.r = set(); self.srcC = set(); self.ab = set()
        R = [regs(o) for o in self.ops]
        allr = lambda l: set().union(*l) if l else set()
        if self.label: return
        if mn.startswith("v_mfma"):
            self.cls = "mfma"; self.w = R[0]; self.ab = R[1] | R[2]; self.srcC = R[3]; self.r = self.ab | self.srcC
            self.passes = 8 if "32x32x16" in mn else 4
        elif mn.startswith("v_"):
            self.cls = "valu"
            if "swap" in mn: self.w = R[0] | R[1]; self.r = R[0] | R[1]
            elif mn.startswith(("v_add_co", "v_addc_co", "v_sub_co")): self.w = R[0] | R[1]; self.r = allr(R[2:])
            else:
                self.w = R[0]; self.r = allr(R[1:])
                if mn.startswith(("v_fmac", "v_dot2c", "v_writelane", "v_pk_fmac")) or "dpp" in mn or "sdwa" in mn: self.r |= R[0]
            self.trans = mn.replace("_e32", "").replace("_e64", "") in TRANS
            self.dpp = "dpp" in mn or "row_" in self.mods or "quad_perm" in self.mods
        elif mn.startswith("ds_"):
            self.cls = "ds"
            if "read" in mn or "permute" in mn or "swizzle" in mn: self.w = R[0]; self.r = allr(R[1:])
            else: self.r = allr(R)
        elif mn.startswith(("buffer_", "global_")):
            self.cls = "vmem"
            if "load" in mn and not (" lds" in " " + self.mods or "_lds_" in mn): self.w = R[0]; self.r = allr(R[1:])
            else: self.r = allr(R)
            self.ldsdma = " lds" in " " + self.mods or "_lds_" in mn
            self.widestore = "store" in mn and ("x4" in mn or "x3" in mn)
            self.data = R[0] if mn.startswith("buffer_") else (R[1] if len(R) > 1 else set())
        elif mn.startswith("s_"):
            self.cls = "salu"
            if not mn.startswith(("s_cmp", "s_waitcnt", "s_nop", "s_barrier", "s_cbranch", "s_branch", "s_endpgm", "s_setprio", "s_sleep")) and R:
                self.w = R[0]; self.r = allr(R[1:])
    def states(self):
        if self.label: return 0
        if self.mn == "s_nop": return int(self.ops[0], 0) + 1
        return 1
def vec(s): return {x for x in s if x[0] in "va"}
def sc(s): return {x for x in s if x[0] == "s"}
def need(p, c):
    n = 0
    if p.cls == "valu":
        wv = vec(p.w); ws = sc(p.w)
        if c.cls == "mfma" and wv & c.r: n = max(n, 2)
        if c.cls == "valu":
            if p.trans and not c.trans and wv & c.r: n = max(n, 1)
            if p.trans and c.trans and wv & c.r: n = max(n, 1)
            if "permlane" in c.mn and wv & c.r: n = max(n, 2)
            if c.dpp and wv & c.r: n = max(n, 2)
            if c.mn.startswith(("v_readlane", "v_readfirstlane")) and wv & c.r: n = max(n, 1)
            if ws & c.r: n = max(n, 4 if c.mn.startswith(("v_readlane", "v_writelane")) else 2)
            if ("sdwa" in p.mn or "op_sel" in p.mods and not p.mn.startswith("v_pk_")) and wv & (c.r | c.w): n = max(n, 1)
        if p.trans and c.cls in ("ds", "vmem") and wv & c.r: n = max(n, 1)
        if c.cls == "vmem" and ws & c.r: n = max(n, 5)
        if c.cls == "salu" and ws & c.r: n = max(n, 1)
    elif p.cls == "mfma":
        big = {4: 8, 8: 12}[p.passes]
        if c.cls == "mfma":
            if p.w & c.ab: n = max(n, big)
            if p.w & c.srcC and not (p.w == c.srcC and p.passes == c.passes): n = max(n, big - 2)
            if p.w & c.w and p.w != c.srcC: n = max(n, big)
        elif c.cls in ("valu", "ds", "vmem"):
            if p.w & (c.r | c.w): n = max(n, big)
            if c.cls == "valu" and p.srcC & c.w: n = max(n, p.passes - 1)
    elif p.cls == "salu":
        if ("s", 124) in p.w and c.cls == "vmem" and c.ldsdma: n = max(n, 1)
    elif p.cls == "vmem":
        if p.widestore and c.cls in ("valu", "ds", "vmem", "mfma") and p.data & c.w: n = max(n, 2)
    return n
def fix(lines, verbose=False):
    out = []; hist = []
    total = 0
    flat = []
    for l in lines: flat += l.split("\n")
    for l in flat:
        c = I(l)
        if not c.label:
            d = 0; miss = 0
            for p in reversed(hist):
                if d >= 12: break
                k = need(p, c)
                if k > d: miss = max(miss, k - d)
                d += p.states()
            if miss:
                nop = I(f"s_nop {miss-1}")
                out.append(nop.text); hist.append(nop); total += miss
                if verbose: print("nop", miss, "before", l)
            hist.append(c)
        out.append(l)
    return out
```

```python
import sys, json
sys.path.insert(0, "gen")
from common import *
import gemm, fft, hazard
WS = gemm.WS
NAME = "interleave_layers__spectral_gfnet__glu_gated_bilinear__prompt"
HEAD = open("cdna_kernels/" + NAME + ".s.ref").read().split("; Override launch geometry")[0] if len(sys.argv) else ""

def align4(n): return (n + 3) // 4 * 4
def generate(opt, head=True):
    o = lambda k, slot: dict(opt.get(k, {}), stamp=opt.get("stamp", False), slot=slot)
    bodies = {}
    sh = opt.get("share", not opt.get("stamp", False))
    launches = []; text = []
    def add(kname, bname, fn, okey, slot, params, grid):
        if not sh: bname = kname
        first = bname not in bodies
        if first:
            r = fn(bname, o(okey, slot))
            L = hazard.fix(r[0])
            bodies[bname] = (L, r[1], r[2] if len(r) > 2 else 512)
        L, lds, nv = bodies[bname]
        launches.append(f"; @launch kernel={kname}_kernel grid=({grid},1,1) block=(256,1,1) lds={lds}")
        t = [entry(f"{kname}_kernel")] + [f"s_mov_b32 {k}, {v}" for k, v in params.items()]
        if first: t += L
        else: t.append(f"s_branch L_{bname}")
        t.append(kd(f"{kname}_kernel", nv, min(align4(nv), 256)))
        text.append("\n".join(t))
    for ly in (1, 2):
        Z, V, XA, XN, H = WS[f"Z{ly}"], WS[f"V{ly}"], WS["X1" if ly == 1 else "X3"], WS[f"XN{ly}"], WS[f"H{ly}"]
        b = (ly - 1) * 5
        add(f"k1l{ly}", "k1", fft.k1, "k1", b + 0, {"s3": int(ly == 1), "s35": WS["X2"], "s4": Z, "s5": WS["WT"], "s34": 512 if ly == 1 else 256}, 512 if ly == 1 else 256)
        add(f"k2l{ly}", "k2", fft.k2, "k2", b + 1, {"s3": Z, "s4": V, "s5": WS["WT"]}, 256)
        add(f"k3l{ly}", "k3", fft.k3, "k3", b + 2, {"s3": int(ly == 1), "s35": WS["X2"], "s4": V, "s5": XA, "s34": XN}, 256)
        add(f"g1l{ly}", "g1", gemm.gemm1, "g1", b + 3, {"s4": XN, "s5": H}, 256)
        add(f"g2l{ly}", "g2", gemm.gemm2, "g2", b + 4, {"s4": H, "s5": XA, "s3": int(ly == 2), "s35": WS["X2"]}, 256)
    s = (HEAD if head else "") + "\n".join(launches) + '\n.amdgcn_target "amdgcn-amd-amdhsa--gfx950"\n.text\n' + "\n".join(text)
    return s
if __name__ == "__main__":
    opt = json.loads(sys.argv[2]) if len(sys.argv) > 2 else {}
    fn = sys.argv[1] if len(sys.argv) > 1 else "cdna_kernels/" + NAME + ".s"
    open(fn, "w").write(generate(opt))
```

```python
import sys, json
sys.path.insert(0, "gen")
from common import *
import gemm, fft, hazard
WS = gemm.WS
NAME = "interleave_layers__spectral_gfnet__glu_gated_bilinear__prompt"
HEAD = open("cdna_kernels/" + NAME + ".s.ref").read().split("; Override launch geometry")[0] if len(sys.argv) else ""

def probe_write(k):
    return ["s_memrealtime s[12:13]", "s_cmp_lg_u32 s2, 0", f"s_cbranch_scc1 L_{k}_noprobe", "s_load_dwordx2 s[8:9], s[0:1], 72", "s_waitcnt lgkmcnt(0)",
            f"s_add_u32 s8, s8, {220<<20}", "s_addc_u32 s9, s9, 0", "s_and_b32 s9, s9, 0xffff", "s_mov_b32 s10, 4", "s_mov_b32 s11, 0x20000",
            "v_mov_b32 v1, s12", "v_lshlrev_b32 v2, 2, v0", "buffer_store_dword v1, v2, s[8:11], 0 offen", f"L_{k}_noprobe:"]
def align4(n): return (n + 3) // 4 * 4
def generate(opt, head=True):
    o = lambda k, slot: dict(opt.get(k, {}), stamp=opt.get("stamp", False), slot=slot)
    bodies = {}
    sh = opt.get("share", not opt.get("stamp", False))
    launches = []; text = []
    def add(kname, bname, fn, okey, slot, params, grid):
        if not sh: bname = kname
        first = bname not in bodies
        if first:
            r = fn(bname, o(okey, slot))
            L = hazard.fix(r[0])
            bodies[bname] = (L, r[1], r[2] if len(r) > 2 else 512)
        L, lds, nv = bodies[bname]
        launches.append(f"; @launch kernel={kname}_kernel grid=({grid},1,1) block=(256,1,1) lds={lds}")
        t = [entry(f"{kname}_kernel")]
        if opt.get("probe", -1) == slot: t += probe_write(kname)
        t += [f"s_mov_b32 {k}, {v}" for k, v in params.items()]
        if first: t += L
        else: t.append(f"s_branch L_{bname}")
        t.append(kd(f"{kname}_kernel", nv, min(align4(nv), 256)))
        text.append("\n".join(t))
    for ly in (1, 2):
        Z, V, XA, XN, H = WS[f"Z{ly}"], WS[f"V{ly}"], WS["X1" if ly == 1 else "X3"], WS[f"XN{ly}"], WS[f"H{ly}"]
        b = (ly - 1) * 5
        add(f"k1l{ly}", "k1", fft.k1, "k1", b + 0, {"s3": int(ly == 1), "s35": WS["X2"], "s4": Z, "s5": WS["WT"], "s34": 512 if ly == 1 else 256}, 512 if ly == 1 else 256)
        add(f"k2l{ly}", "k2", fft.k2, "k2", b + 1, {"s3": Z, "s4": V, "s5": WS["WT"]}, 256)
        add(f"k3l{ly}", "k3", fft.k3, "k3", b + 2, {"s3": int(ly == 1), "s35": WS["X2"], "s4": V, "s5": XA, "s34": XN}, 256)
        add(f"g1l{ly}", "g1", gemm.gemm1, "g1", b + 3, {"s4": XN, "s5": H}, 256)
        add(f"g2l{ly}", "g2", gemm.gemm2, "g2", b + 4, {"s4": H, "s5": XA, "s3": int(ly == 2), "s35": WS["X2"]}, 256)
    if "probe" in opt:
        launches.append("; @launch kernel=probe_kernel grid=(1,1,1) block=(64,1,1) lds=0")
        t = [entry("probe_kernel")]
        t += ["s_memrealtime s[12:13]", "s_cmp_lg_u32 s2, 0", "s_cbranch_scc1 L_probe_end", "s_load_dwordx2 s[6:7], s[0:1], 72", "s_waitcnt lgkmcnt(0)",
              f"s_add_u32 s6, s6, {220<<20}", "s_addc_u32 s7, s7, 0", "s_load_dword s8, s[6:7], 0", "s_waitcnt lgkmcnt(0)"]
        if opt["probe"] == 99: t.append("s_mov_b32 s8, s12")
        t += ["L_probe_spin:", "s_memrealtime s[10:11]", "s_waitcnt lgkmcnt(0)", "s_sub_u32 s10, s10, s8", "s_cmp_lt_u32 s10, 20000", "s_cbranch_scc1 L_probe_spin",
              "L_probe_end:", "s_endpgm", kd("probe_kernel", 8, 8)]
        text.append("\n".join(t))
    s = (HEAD if head else "") + "\n".join(launches) + '\n.amdgcn_target "amdgcn-amd-amdhsa--gfx950"\n.text\n' + "\n".join(text)
    return s
if __name__ == "__main__":
    opt = json.loads(sys.argv[2]) if len(sys.argv) > 2 else {}
    fn = sys.argv[1] if len(sys.argv) > 1 else "cdna_kernels/" + NAME + ".s"
    open(fn, "w").write(generate(opt))
```

```python
class Op:
    __slots__ = ("text", "kind", "tag")
    def __init__(self, text, kind="x", tag=None):
        self.text, self.kind, self.tag = text, kind, tag

def kd(name, vgpr, accum, sgpr=96):
    return f""".section .rodata,"a"
.p2align 6
.amdhsa_kernel {name}
  .amdhsa_next_free_vgpr {vgpr}
  .amdhsa_next_free_sgpr {sgpr}
  .amdhsa_accum_offset {accum}
  .amdhsa_group_segment_fixed_size 0
  .amdhsa_kernarg_size 80
  .amdhsa_user_sgpr_count 2
  .amdhsa_user_sgpr_kernarg_segment_ptr 1
  .amdhsa_system_sgpr_workgroup_id_x 1
  .amdhsa_float_denorm_mode_32 3
.end_amdhsa_kernel
.text
"""

def entry(name):
    return f".globl {name}\n.p2align 8\n.type {name},@function\n{name}:"

def resolve_waits(ops):
    vm, ds = [], []
    for o in ops:
        if o.kind == "vm": vm.append(o.tag)
        elif o.kind == "ds": ds.append(o.tag)
        elif o.kind in ("wvm", "wds"):
            q = vm if o.kind == "wvm" else ds
            tags = o.tag if isinstance(o.tag, list) else [o.tag]
            last = -1
            for i, t in enumerate(q):
                if t in tags: last = i
            assert last >= 0, ("wait for unknown tag", o.tag)
            n = len(q) - 1 - last
            mx = 63 if o.kind == "wvm" else 15
            n = min(n, mx)
            o.text = f"s_waitcnt {'vmcnt' if o.kind == 'wvm' else 'lgkmcnt'}({n})"
    return ops

def fold_loop(stages, P, label, sreg):
    T = len(stages)
    best = (0, 0)
    for s in range(T):
        n = 1
        while s + (n + 1) * P <= T and all(stages[s + n * P + i] == stages[s + i] for i in range(P)): n += 1
        if s + P <= T and n > best[1]: best = (s, n)
    s, n = best
    out = []
    if n < 2:
        for st in stages: out += st
        return out
    for st in stages[:s]: out += st
    out.append(f"s_mov_b32 {sreg}, {n}")
    out.append(f"{label}:")
    body = []
    for st in stages[s:s + P]: body += st
    out += body[:-2]
    out.append(f"s_sub_u32 {sreg}, {sreg}, 1")
    out.append(body[-2])
    out.append(f"s_cmp_lg_u32 {sreg}, 0")
    out.append(body[-1])
    assert not body[-1].startswith("s_add") and not body[-1].startswith("s_cmp") and not body[-1].startswith("s_sub") and not body[-1].startswith("s_and"), body[-1]
    out.append(f"s_cbranch_scc1 {label}")
    for st in stages[s + n * P:]: out += st
    return out

def srd(a, d, lo, hi, nbytes):
    a(f"s_mov_b32 s{d}, {lo}")
    a(f"s_and_b32 s{d+1}, {hi}, 0xffff")
    a(f"s_mov_b32 s{d+2}, {nbytes}")
    a(f"s_mov_b32 s{d+3}, 0x20000")

def stamp(a, opt, i):
    if opt.get("stamp"):
        a(f"s_memrealtime s[{64+2*i}:{65+2*i}]")
def stamp_out(a, opt, n, slot, vt):
    if not opt.get("stamp"): return
    a("s_waitcnt vmcnt(0)")
    a(f"s_memrealtime s[{64+2*n}:{65+2*n}]")
    a("s_load_dwordx2 s[88:89], s[0:1], 72")
    a("s_waitcnt lgkmcnt(0)")
    a(f"s_add_u32 s88, s88, s63"); a("s_addc_u32 s89, s89, 0")
    a("s_and_b32 s89, s89, 0xffff"); a("s_mov_b32 s90, 65536"); a("s_mov_b32 s91, 0x20000")
    a(f"v_mbcnt_lo_u32_b32 v{vt}, -1, 0"); a(f"v_mbcnt_hi_u32_b32 v{vt}, -1, v{vt}")
    a(f"s_lshl_b32 s87, s2, 2"); a(f"s_add_u32 s87, s87, s29"); a("s_lshl_b32 s87, s87, 5")
    a(f"v_cmp_eq_u32 vcc, 0, v{vt}"); a("s_and_saveexec_b64 s[92:93], vcc")
    for i in range(n + 1):
        a(f"v_mov_b32 v{vt+1}, s{64+2*i}")
        a(f"buffer_store_dword v{vt+1}, v{vt}, s[88:91], s87 offen offset:{4*i}")


def pf_addr(a, v, sreg=60):
    a(f"v_lshlrev_b32 v{v}, 7, v0")
    a(f"v_min_u32 v{v}, s{sreg+2}, v{v}")
def pf_issue(a, v, sreg=60):
    a(f"global_load_dword v{v}, v{v}, s[{sreg}:{sreg+1}]")
def stub_code_range(label, endlabel, here, sreg=60):
    return [f"s_getpc_b64 s[{sreg}:{sreg+1}]", f"{here}:", f"s_add_u32 s{sreg}, s{sreg}, {label}-{here}", f"s_addc_u32 s{sreg+1}, s{sreg+1}, ({label}-{here})>>32",
            "s_cmp_lt_u32 s2, 32", f"s_cselect_b32 s{sreg+2}, {endlabel}-{label}, 0"]
```

```python
from common import *
import struct
MB = 1 << 20
ZS = 16384 + 128
sWave = 29

def fl(x): return "0x%08x" % struct.unpack("<I", struct.pack("<f", x))[0]
def rho(h, r): return 8 * (r >> 2) + 4 * h + (r & 3)

class RA:
    def __init__(self, start=1): self.n = start
    def __call__(self, k=1, al=1):
        self.n = (self.n + al - 1) // al * al
        r = self.n; self.n += k; return r

def vr(b, n): return f"v[{b}:{b+n-1}]"
def mfma(a, d, x, y, first): a(f"v_mfma_f32_32x32x16_bf16 {vr(d,16)}, {vr(x,4)}, {vr(y,4)}, {'0' if first else vr(d,16)}")

def ws_srd(a, d, soff, nbytes):
    a(f"s_add_u32 s{d}, s6, {soff}"); a(f"s_addc_u32 s{d+1}, s7, 0"); a(f"s_and_b32 s{d+1}, s{d+1}, 0xffff")
    a(f"s_mov_b32 s{d+2}, {nbytes}"); a(f"s_mov_b32 s{d+3}, 0x20000")

def lane_wave(a, vL, vt):
    a(f"v_lshrrev_b32 v{vt}, 6, v0")
    a(f"v_and_b32 v{vL}, 63, v0")
    a(f"v_readfirstlane_b32 s{sWave}, v{vt}")

def sincos16(a, f, base, mult, co, si, tmp):
    for r in range(16):
        m = mult(r)
        t = tmp + (r & 1)
        if m == 0: src = base
        else: a(f"v_fmamk_f32 v{t}, v{f}, {fl(float(m))}, v{base}"); src = t
        a(f"v_cos_f32 v{co+r}, v{src}"); a(f"v_sin_f32 v{si+r}, v{src}")

def f32consts(a, vL, C, S, NS, t32, tmp):
    f, base = tmp + 2, tmp + 3
    a(f"v_and_b32 v{f}, 31, v{vL}"); a(f"v_cvt_f32_u32 v{f}, v{f}"); a(f"v_mul_f32 v{f}, {fl(1/32)}, v{f}")
    a(f"v_lshrrev_b32 v{base}, 5, v{vL}"); a(f"v_cvt_f32_u32 v{base}, v{base}"); a(f"v_mul_f32 v{base}, 4.0, v{base}"); a(f"v_mul_f32 v{base}, v{base}, v{f}")
    sincos16(a, f, base, lambda r: rho(0, r), t32, t32 + 16, tmp)
    for p in range(8):
        a(f"v_cvt_pk_bf16_f32 v{C+p}, v{t32+2*p}, v{t32+2*p+1}")
        a(f"v_cvt_pk_bf16_f32 v{S+p}, v{t32+16+2*p}, v{t32+16+2*p+1}")
        a(f"v_cvt_pk_bf16_f32 v{NS+p}, -v{t32+16+2*p}, -v{t32+16+2*p+1}")

def cmul_pack(a, re, im, co, si, conj, PR, PI, tmp):
    for p in range(8):
        r = 2 * p
        t = tmp + 4 * (p & 1)
        a(f"v_pk_mul_f32 {vr(t,2)}, {vr(re+r,2)}, {vr(co+r,2)}")
        a(f"v_pk_mul_f32 {vr(t+2,2)}, {vr(im+r,2)}, {vr(co+r,2)}")
        neg = " neg_lo:[0,1,0] neg_hi:[0,1,0]"
        a(f"v_pk_fma_f32 {vr(t,2)}, {vr(im+r,2)}, {vr(si+r,2)}, {vr(t,2)}" + (neg if conj else ""))
        a(f"v_pk_fma_f32 {vr(t+2,2)}, {vr(re+r,2)}, {vr(si+r,2)}, {vr(t+2,2)}" + ("" if conj else neg))
        a(f"v_cvt_pk_bf16_f32 v{PR+p}, v{t}, v{t+1}")
        a(f"v_cvt_pk_bf16_f32 v{PI+p}, v{t+2}, v{t+3}")

def cstage(a, DR, DI, PR, PI, C, S, NS, fwd, dataA):
    s1, s2 = (S, NS) if fwd else (NS, S)
    def m(d, x, c, first):
        if dataA: mfma(a, d, x, c, first)
        else: mfma(a, d, c, x, first)
    for t in range(2):
        m(DR, PR + 4 * t, C + 4 * t, t == 0)
        m(DI, PI + 4 * t, C + 4 * t, t == 0)
        m(DR, PI + 4 * t, s1 + 4 * t, False)
        m(DI, PR + 4 * t, s2 + 4 * t, False)

def reduce4(a, A, B, Cc, D, s0):
    a(f"v_permlane32_swap_b32 v{A}, v{B}"); a(f"v_permlane32_swap_b32 v{Cc}, v{D}")
    a(f"v_add_f32 v{A}, v{A}, v{B}"); a(f"v_add_f32 v{Cc}, v{Cc}, v{D}")
    a(f"v_permlane16_swap_b32 v{A}, v{Cc}")
    a(f"v_add_f32 v{A}, v{A}, v{Cc}")
    for k in (8, 4, 2, 1): a(f"v_add_f32_dpp v{A}, v{A}, v{A} row_ror:{k} row_mask:0xf bank_mask:0xf")
    for i, ln in enumerate((0, 32, 16, 48)): a(f"v_readlane_b32 s{s0+i}, v{A}, {ln}")

def ln_coef(a, ssum, ssq, vm, vrs):
    a(f"v_mul_f32 v{vm}, {fl(1/1024)}, s{ssum}" if False else f"v_mov_b32 v{vm}, s{ssum}")
    a(f"v_mov_b32 v{vrs}, s{ssq}")
    a(f"v_mul_f32 v{vm}, {fl(1/1024)}, v{vm}")
    a(f"v_mul_f32 v{vrs}, {fl(1/1024)}, v{vrs}")
    a(f"v_fma_f32 v{vrs}, -v{vm}, v{vm}, v{vrs}")
    a(f"v_max_f32 v{vrs}, 0, v{vrs}")
    a(f"v_add_f32 v{vrs}, {fl(1e-5)}, v{vrs}")
    a(f"v_rsq_f32 v{vrs}, v{vrs}")
    a(f"v_mul_f32 v{vm}, v{vm}, v{vrs}")
    a(f"v_sub_f32 v{vm}, 0, v{vm}")

def prep(a, name, opt):
    R = RA(2)
    vL, vT, vA, vO = R(), R(), R(), R()
    X = R(32, 4); Y = R(16, 4)
    a(f"L_{name}_prep:")
    a("s_load_dwordx4 s[36:39], s[0:1], 8")
    a("s_load_dwordx2 s[6:7], s[0:1], 72")
    lane_wave(a, vL, vT)
    a("s_sub_u32 s30, s2, 256"); a("s_and_b32 s31, s30, 7"); a("s_bfe_u32 s32, s30, 0x20003"); a("s_lshr_b32 s33, s30, 5")
    a(f"s_lshl_b32 s34, s31, 2"); a(f"s_add_u32 s34, s34, s{sWave}"); a("s_lshl_b32 s34, s34, 4")
    a(f"v_and_b32 v{vT}, 15, v{vL}"); a(f"v_add_u32 v{vT}, s34, v{vT}")
    a(f"v_and_b32 v{vO}, 255, v{vT}"); a(f"v_lshlrev_b32 v{vO}, 14, v{vO}")
    a(f"v_lshrrev_b32 v{vA}, 8, v{vT}"); a(f"v_lshl_add_u32 v{vO}, v{vA}, 13, v{vO}")
    a(f"v_cmp_eq_u32 vcc, 0, v{vT}"); a(f"v_mov_b32 v{vA}, 512"); a(f"v_cndmask_b32 v{vT}, v{vT}, v{vA}, vcc")
    a(f"v_lshrrev_b32 v{vA}, 4, v{vL}")
    a(f"v_lshl_add_u32 v{vO}, v{vA}, 4, v{vO}")
    a(f"v_mul_u32_u24 v{vA}, 2052, v{vA}"); a(f"v_lshl_add_u32 v{vA}, v{vT}, 1, v{vA}")
    a("s_lshl_b32 s34, s33, 4"); a("s_add_u32 s34, s34, s32"); a(f"s_mul_i32 s34, s34, {16*1026}")
    a("s_lshl_b32 s35, s33, 2"); a("s_add_u32 s35, s35, s32"); a("s_lshl_b32 s35, s35, 7")
    a("s_waitcnt lgkmcnt(0)")
    srd(a, 8, "s36", "s37", 2048 * 1026); srd(a, 12, "s38", "s39", 2048 * 1026)
    ws_srd(a, 16, "s5", 4 * MB)
    for g in range(4):
        for j in range(4):
            off = ((g & 1) + 8 * (g >> 1) + 64 * j) * 1026
            a(f"s_add_u32 s30, s34, {off}")
            a(f"buffer_load_ushort v{X+8*g+j}, v{vA}, s[8:11], s30 offen")
            a(f"buffer_load_ushort v{X+8*g+4+j}, v{vA}, s[12:15], s30 offen")
    for g in range(4):
        a(f"s_waitcnt vmcnt({8*(3-g)+g})")
        for j in range(4): a(f"v_lshl_or_b32 v{Y+4*g+j}, v{X+8*g+4+j}, 16, v{X+8*g+j}")
        a(f"s_add_u32 s30, s35, {(g&1)*4096 + (g>>1)*64}")
        a(f"buffer_store_dwordx4 {vr(Y+4*g,4)}, v{vO}, s[16:19], s30 offen {opt.get('sf','sc1')}")
    a("s_endpgm")

def k1(name, opt):
    L = []; a = L.append
    R = RA(1)
    vPF, vL, vT, vT2, vA = R(), R(), R(), R(), R()
    tmp = R(8, 2); X = R(16, 4); F = R(32, 2)
    C, S, NS = R(8, 4), R(8, 4), R(8, 4)
    TC, TS = R(16, 2), R(16, 2)
    vW, vTr, vW2, vSt = R(), R(), R(), R(); RP = R(4); RM = R(4)
    PR, PI = R(8, 4), R(8, 4); DR, DI = R(16, 4), R(16, 4)
    OB, WST, NST = 16384, 4896, 9984
    a(f"L_{name}:")
    stamp(a, opt, 0)
    a("s_cmp_ge_u32 s2, s34"); a(f"s_cbranch_scc1 L_{name}_end")
    a("s_cmp_ge_u32 s2, 256"); a(f"s_cbranch_scc1 L_{name}_prep")
    a("s_load_dwordx2 s[36:37], s[0:1], 0")
    a("s_load_dwordx2 s[38:39], s[0:1], 56")
    a("s_load_dwordx2 s[6:7], s[0:1], 72")
    lane_wave(a, vL, vT)
    a(f"v_lshlrev_b32 v{vA}, 4, v{vL}")
    a("s_and_b32 s30, s2, 31"); a("s_lshr_b32 s31, s2, 5"); a("s_lshl_b32 s31, s31, 6"); a("s_add_u32 s30, s30, s31")
    a(f"s_lshr_b32 s31, s{sWave}, 1"); a("s_lshl_b32 s31, s31, 5"); a("s_add_u32 s30, s30, s31")
    a(f"s_and_b32 s31, s{sWave}, 1"); a("s_lshl_b32 s31, s31, 9"); a("s_add_u32 s30, s30, s31")
    a("s_lshl_b32 s30, s30, 11"); a(f"s_add_u32 s31, s30, {2*MB}")
    NP = opt.get("NP", 0)
    if NP:
        PP = PR; R(max(0, 16 * (NP + 1) - 48))
        a(f"v_and_b32 v{vT}, 1, v{vL}"); a(f"v_lshlrev_b32 v{vT2}, 10, v{vT}")
        a(f"v_bfe_u32 v{vT}, v{vL}, 1, 1"); a(f"v_lshl_add_u32 v{vT2}, v{vT}, 9, v{vT2}")
        a(f"v_lshrrev_b32 v{vT}, 2, v{vL}"); a(f"v_lshl_add_u32 v{vT2}, v{vT}, 4, v{vT2}")
    a("s_waitcnt lgkmcnt(0)")
    if NP:
        a("s_cmp_lg_u32 s3, 1"); a(f"s_cbranch_scc1 L_{name}_red")
        srd(a, 8, "s36", "s37", 4 * MB)
    else:
        a("s_add_u32 s40, s6, s35"); a("s_addc_u32 s41, s7, 0")
        a("s_cmp_eq_u32 s3, 1"); a("s_cselect_b32 s8, s36, s40"); a("s_cselect_b32 s9, s37, s41")
        a("s_and_b32 s9, s9, 0xffff"); a(f"s_mov_b32 s10, {4*MB}"); a("s_mov_b32 s11, 0x20000")
    a(f"buffer_load_dwordx4 {vr(X,4)}, v{vA}, s[8:11], s30 offen")
    a(f"buffer_load_dwordx4 {vr(X+4,4)}, v{vA}, s[8:11], s30 offen offset:1024")
    a(f"buffer_load_dwordx4 {vr(X+8,4)}, v{vA}, s[8:11], s31 offen")
    a(f"buffer_load_dwordx4 {vr(X+12,4)}, v{vA}, s[8:11], s31 offen offset:1024")
    if NP:
        a(f"s_branch L_{name}_loaded")
        a(f"L_{name}_red:")
        ws_srd(a, 8, "s50", NP * 4 * MB); ws_srd(a, 16, "s51", 4 * MB)
        for rw in range(2):
            for i in range(2): a(f"buffer_load_dwordx4 {vr(PP+8*rw+4*i,4)}, v{vT2}, s[16:19], s{30+rw} offen offset:{256*i}")
        for p in range(NP):
            for rw in range(2):
                if p: a(f"s_add_u32 s{52+rw}, s{30+rw}, {p*4*MB}")
                for i in range(2): a(f"buffer_load_dwordx4 {vr(PP+16*(p+1)+8*rw+4*i,4)}, v{vA}, s[8:11], s{(52 if p else 30)+rw} offen offset:{1024*i}")
        a("s_add_u32 s40, s6, s35"); a("s_addc_u32 s41, s7, 0")
        a("s_cmp_eq_u32 s3, 2"); a("s_cselect_b32 s20, s38, s40"); a("s_cselect_b32 s21, s39, s41")
        a("s_and_b32 s21, s21, 0xffff"); a(f"s_mov_b32 s22, {4*MB}"); a("s_mov_b32 s23, 0x20000")
        a("s_mov_b32 s52, s30"); a("s_mov_b32 s53, s31")
        a("s_cmp_eq_u32 s3, 2"); a(f"s_cbranch_scc1 L_{name}_sum")
        a(f"L_{name}_loaded:")
    ws_srd(a, 12, "s4", 256 * ZS)
    f32consts(a, vL, C, S, NS, F, tmp)
    a(f"v_mul_f32 v{tmp+2}, {fl(1/32)}, v{tmp+2}"); a(f"v_mul_f32 v{tmp+3}, {fl(1/32)}, v{tmp+3}")
    sincos16(a, tmp + 2, tmp + 3, lambda r: rho(0, r), TC, TS, tmp)
    a(f"s_lshr_b32 s30, s{sWave}, 1"); a(f"s_and_b32 s31, s{sWave}, 1")
    a("s_lshl_b32 s32, s30, 13"); a("s_lshl_b32 s33, s31, 11"); a("s_add_u32 s32, s32, s33")
    a(f"v_add_u32 v{vW}, s32, v{vA}")
    a(f"v_lshrrev_b32 v{vT}, 5, v{vL}"); a(f"v_bfe_u32 v{vT2}, v{vL}, 2, 2"); a(f"v_lshl_add_u32 v{vT2}, v{vT}, 2, v{vT2}")
    a(f"v_lshlrev_b32 v{vTr}, 6, v{vT2}")
    a(f"v_bfe_u32 v{vT2}, v{vL}, 4, 1"); a(f"v_lshl_add_u32 v{vTr}, v{vT2}, 5, v{vTr}")
    a(f"v_and_b32 v{vT2}, 3, v{vL}"); a(f"v_lshl_add_u32 v{vTr}, v{vT2}, 3, v{vTr}")
    a(f"s_lshl_b32 s32, s{sWave}, 12"); a(f"v_add_u32 v{vTr}, s32, v{vTr}")
    a(f"s_mul_i32 s32, s30, {NST}"); a(f"s_mul_i32 s33, s31, {WST}"); a("s_add_u32 s32, s32, s33"); a(f"s_add_u32 s32, s32, {OB}")
    a(f"v_and_b32 v{vT2}, 31, v{vL}"); a(f"v_mul_u32_u24 v{vW2}, 144, v{vT2}")
    a(f"v_lshrrev_b32 v{vT2}, 3, v{vT2}"); a(f"v_lshl_add_u32 v{vW2}, v{vT2}, 6, v{vW2}")
    a(f"v_lshl_add_u32 v{vW2}, v{vT}, 4, v{vW2}"); a(f"v_add_u32 v{vW2}, s32, v{vW2}")
    a(f"s_lshl_b32 s32, s{sWave}, 4")
    a(f"v_lshrrev_b32 v{vT}, 2, v{vL}"); a(f"v_add_u32 v{vT}, s32, v{vT}")
    a(f"v_mul_u32_u24 v{vSt}, {ZS}, v{vT}"); a(f"v_and_b32 v{vT2}, 3, v{vL}"); a(f"v_lshl_add_u32 v{vSt}, v{vT2}, 4, v{vSt}")
    a(f"v_bfe_u32 v{vT2}, v{vL}, 1, 1"); a(f"v_lshl_add_u32 v{vT}, v{vT2}, 8, v{vT}")
    a(f"v_and_b32 v{vT2}, 1, v{vL}"); a(f"v_mul_u32_u24 v{vT2}, {WST}, v{vT2}"); a(f"v_add_u32 v{vT2}, {OB}, v{vT2}")
    def pos(dst, l):
        a(f"v_lshrrev_b32 v{tmp}, 5, v{l}"); a(f"v_lshl_add_u32 v{tmp}, v{tmp}, 2, v{l}")
        a(f"v_lshrrev_b32 v{tmp+1}, 8, v{l}"); a(f"v_lshl_add_u32 v{tmp}, v{tmp+1}, 4, v{tmp}")
        a(f"v_lshl_add_u32 v{dst}, v{tmp}, 2, v{vT2}")
    a(f"v_mov_b32 v{tmp+4}, 512"); a(f"v_cmp_eq_u32 vcc, 0, v{vT}")
    a(f"v_sub_u32 v{tmp+5}, 1024, v{vT}")
    a(f"v_cndmask_b32 v{tmp+6}, v{vT}, v{tmp+4}, vcc"); pos(RP, tmp + 6)
    a(f"v_cndmask_b32 v{tmp+6}, v{tmp+5}, v{tmp+4}, vcc"); pos(RM, tmp + 6)
    a(f"v_add_u32 v{tmp+6}, 64, v{vT}"); pos(RP + 1, tmp + 6)
    a(f"v_subrev_u32 v{tmp+6}, 64, v{tmp+5}"); pos(RM + 1, tmp + 6)
    for i in (2, 3):
        a(f"v_add_u32 v{RP+i}, {(i-1)*288}, v{RP+1}"); a(f"v_subrev_u32 v{RM+i}, {(i-1)*288}, v{RM+1}")
    a("s_lshl_b32 s42, s2, 6")
    for i in range(1, 4): a(f"s_add_u32 s{42+i}, s42, {i*64*ZS}")
    stamp(a, opt, 1)
    if NP:
        a("s_cmp_eq_u32 s3, 1"); a(f"s_cbranch_scc1 L_{name}_ln0")
        a(f"L_{name}_sum:")
        a(f"v_mov_b32 v{tmp+4}, 0x3f80"); a(f"v_mov_b32 v{tmp+5}, 0x3f800000")
        a(f"s_waitcnt vmcnt({4*NP})")
        for p in range(16):
            a(f"v_lshlrev_b32 v{F+2*p}, 16, v{PP+p}"); a(f"v_and_b32 v{F+2*p+1}, 0xffff0000, v{PP+p}")
        for k in range(NP):
            for p in range(16):
                if p % 4 == 0: a(f"s_waitcnt vmcnt({4*(NP-k)-1-p//4})")
                for e in range(2): a(f"v_dot2_f32_bf16 v{F+2*p+e}, v{PP+16*(k+1)+p}, v{tmp+4+e}, v{F+2*p+e}")
        a("s_nop 1")
        for p in range(16):
            a(f"v_cvt_pk_bf16_f32 v{X+p}, v{F+2*p}, v{F+2*p+1}")
            if p % 4 == 3: a(f"buffer_store_dwordx4 {vr(X+p-3,4)}, v{vA}, s[20:23], s{52+(p>>3)} offen offset:{1024*((p>>2)&1)} {opt.get('sf','sc1')}")
        a("s_cmp_eq_u32 s3, 2"); a(f"s_cbranch_scc1 L_{name}_fin")
        a(f"s_branch L_{name}_ln")
        a(f"L_{name}_ln0:")
        a("s_waitcnt vmcnt(0)")
        a(f"L_{name}_ln:")
    a(f"v_mov_b32 v{tmp+4}, 0x3f803f80")
    for rw in range(2):
        if not NP: a(f"s_waitcnt vmcnt({2*(1-rw)})")
        x = X + 8 * rw
        a(f"v_dot2_f32_bf16 v{tmp+2*rw}, v{x}, v{tmp+4}, 0"); a(f"v_dot2_f32_bf16 v{tmp+2*rw+1}, v{x}, v{x}, 0")
        for p in range(1, 8):
            a(f"v_dot2_f32_bf16 v{tmp+2*rw}, v{x+p}, v{tmp+4}, v{tmp+2*rw}"); a(f"v_dot2_f32_bf16 v{tmp+2*rw+1}, v{x+p}, v{x+p}, v{tmp+2*rw+1}")
    pf_addr(a, vPF); pf_issue(a, vPF)
    reduce4(a, tmp, tmp + 1, tmp + 2, tmp + 3, 46)
    for p in range(16):
        a(f"v_lshlrev_b32 v{F+2*p}, 16, v{X+p}"); a(f"v_and_b32 v{F+2*p+1}, 0xffff0000, v{X+p}")
    ln_coef(a, 46, 47, tmp, tmp + 2); ln_coef(a, 48, 49, tmp + 4, tmp + 6)
    bc = " op_sel_hi:[1,0,0]"
    for p in range(8):
        fa, fb = F + 2 * p, F + 16 + 2 * p
        a(f"v_pk_fma_f32 {vr(fa,2)}, {vr(fa,2)}, {vr(tmp+2,2)}, {vr(tmp,2)}{bc}")
        a(f"v_pk_fma_f32 {vr(fb,2)}, {vr(fb,2)}, {vr(tmp+6,2)}, {vr(tmp+4,2)}{bc}")
        a(f"v_pk_add_f32 {vr(DR,2)}, {vr(fa,2)}, {vr(fb,2)}")
        a(f"v_pk_add_f32 {vr(DR+2,2)}, {vr(fa,2)}, {vr(fb,2)} neg_lo:[0,1] neg_hi:[0,1]")
        a(f"v_cvt_pk_bf16_f32 v{X+p}, v{DR}, v{DR+1}"); a(f"v_cvt_pk_bf16_f32 v{X+8+p}, v{DR+2}, v{DR+3}")
        if p == 3: a(f"ds_write_b128 v{vW}, {vr(X,4)}"); a(f"ds_write_b128 v{vW}, {vr(X+8,4)} offset:4096")
    a(f"ds_write_b128 v{vW}, {vr(X+4,4)} offset:1024"); a(f"ds_write_b128 v{vW}, {vr(X+12,4)} offset:5120")
    a("s_waitcnt lgkmcnt(0)"); a("s_barrier")
    for t in range(2):
        for part, P in ((0, PR), (1, PI)):
            for jj in range(2): a(f"ds_read_b64_tr_b16 {vr(P+4*t+2*jj,2)}, v{vTr} offset:{part*2048 + (16*t+8*jj)*64}")
    a("s_waitcnt lgkmcnt(0)")
    stamp(a, opt, 2)
    cstage(a, DR, DI, PR, PI, C, S, NS, True, True)
    cmul_pack(a, DR, DI, TC, TS, False, PR, PI, tmp)
    cstage(a, DR, DI, PR, PI, C, S, NS, True, True)
    for r in range(16):
        a(f"v_cvt_pk_bf16_f32 v{X+r}, v{DR+r}, v{DI+r}")
        if r % 4 == 3: a(f"ds_write_b128 v{vW2}, {vr(X+r-3,4)} offset:{32*(r>>2)}")
    a("s_waitcnt lgkmcnt(0)"); a("s_barrier")
    for i in range(4):
        a(f"ds_read2st64_b32 {vr(X+4*i,2)}, v{RP+i} offset0:0 offset1:{NST//256}")
        a(f"ds_read2st64_b32 {vr(X+4*i+2,2)}, v{RM+i} offset0:0 offset1:{NST//256}")
    for i in range(4):
        a(f"s_waitcnt lgkmcnt({2*(3-i)})")
        a(f"buffer_store_dwordx4 {vr(X+4*i,4)}, v{vSt}, s[12:15], s{42+i} offen {opt.get('sf','sc1')}")
    a(f"L_{name}_fin:")
    stamp(a, opt, 3)
    stamp_out(a, opt, 4, opt.get("slot", 0), tmp)
    a(f"L_{name}_end:")
    a("s_endpgm")
    prep(a, name, opt)
    return L, OB + 2 * NST, R.n

def k2(name, opt):
    L = []; a = L.append
    R = RA(1)
    vL, vT, vT2, vA, vK = R(), R(), R(), R(), R()
    tmp = R(8, 2); vW, vSt = R(), R(); X = R(16, 4); W = R(16, 4)
    BR, BI = R(16, 4), R(16, 4); AR, AI = R(16, 4), R(16, 4)
    C, S, NS = R(8, 4), R(8, 4), R(8, 4)
    TC, TS = R(16, 2), R(16, 2); UC, US = R(16, 2), R(16, 2)
    PR, PI = R(8, 4), R(8, 4); DR, DI = R(16, 4), R(16, 4)
    vG = R(4); vR0, vR1, vPF = R(), R(), R()
    RS = 272; CB = 32 * RS; XB = 4 * CB
    a(f"L_{name}:")
    stamp(a, opt, 0)
    a("s_cmp_ge_u32 s2, 256"); a(f"s_cbranch_scc1 L_{name}_end")
    a("s_load_dwordx2 s[6:7], s[0:1], 72")
    lane_wave(a, vL, vT)
    a(f"v_lshlrev_b32 v{vA}, 6, v{vL}"); a(f"v_lshlrev_b32 v{vT2}, 4, v{vL}")
    a(f"s_mul_i32 s30, s2, {ZS}"); a(f"s_lshl_b32 s31, s{sWave}, 4"); a("s_add_u32 s30, s30, s31")
    a(f"s_lshl_b32 s31, s2, 2"); a(f"s_add_u32 s31, s31, s{sWave}"); a("s_lshl_b32 s31, s31, 12")
    a("s_waitcnt lgkmcnt(0)")
    ws_srd(a, 8, "s3", 256 * ZS)
    for i in range(4):
        a(f"buffer_load_dwordx4 {vr(X+4*i,4)}, v{vA}, s[8:11], s30 offen")
        if i < 3: a("s_add_u32 s30, s30, 4096")
    ws_srd(a, 16, "s5", 4 * MB)
    for i in range(4): a(f"buffer_load_dwordx4 {vr(W+4*i,4)}, v{vT2}, s[16:19], s31 offen offset:{1024*i}")
    pf_addr(a, vPF); pf_issue(a, vPF)
    ws_srd(a, 12, "s4", 256 * ZS)
    a(f"s_and_b32 s32, s{sWave}, 1")
    a(f"v_and_b32 v{vT}, 31, v{vL}"); a(f"v_lshl_add_u32 v{vK}, v{vT}, 1, s32"); a(f"v_cvt_f32_u32 v{vK}, v{vK}")
    a(f"v_fma_f32 v{tmp}, v{vK}, 0.5, 0.5"); a(f"v_mul_f32 v{tmp}, 0.5, v{tmp}")
    a(f"v_cos_f32 v{tmp+1}, v{tmp}"); a(f"v_sin_f32 v{vG+2}, v{tmp}")
    a(f"v_mul_f32 v{tmp+2}, {fl(1/64)}, v{vK}")
    a(f"v_add_f32 v{vG}, 1.0, v{tmp+1}"); a(f"v_sub_f32 v{vG+1}, 1.0, v{tmp+1}")
    a(f"v_lshrrev_b32 v{vT}, 5, v{vL}"); a(f"v_cvt_f32_u32 v{vG+3}, v{vT}")
    a(f"v_mul_f32 v{tmp+3}, v{vG+3}, v{tmp+2}"); a(f"v_add_f32 v{tmp+3}, v{tmp+3}, v{tmp+3}")
    for i in range(4):
        for nu in range(2):
            m = 4 * i + nu
            if m: a(f"v_fmamk_f32 v{tmp}, v{tmp+2}, {fl(float(m))}, v{tmp+3}")
            src = tmp if m else tmp + 3
            a(f"v_cos_f32 v{tmp+4}, v{src}"); a(f"v_sin_f32 v{tmp+5}, v{src}")
            a(f"v_mul_f32 v{tmp+6}, v{tmp+4}, v{vG+2}"); a(f"v_mul_f32 v{tmp+7}, v{tmp+5}, v{vG+2}")
            a(f"v_fma_f32 v{DR}, v{tmp+4}, v{vG}, -v{tmp+7}")
            a(f"v_fma_f32 v{DR+1}, v{tmp+5}, v{vG}, v{tmp+6}")
            a(f"v_fma_f32 v{DR+2}, v{tmp+4}, v{vG+1}, v{tmp+7}")
            a(f"v_fma_f32 v{DR+3}, -v{tmp+5}, v{vG+1}, v{tmp+6}")
            a(f"v_cvt_pk_bf16_f32 v{BR+4*i+nu}, v{DR}, v{DR+1}"); a(f"v_cvt_pk_bf16_f32 v{BR+4*i+2+nu}, v{DR+2}, v{DR+3}")
            a(f"v_cvt_pk_bf16_f32 v{BI+4*i+nu}, -v{DR+1}, v{DR}"); a(f"v_cvt_pk_bf16_f32 v{BI+4*i+2+nu}, v{DR+3}, -v{DR+2}")
    a(f"s_mul_i32 s33, s{sWave}, {CB}")
    a(f"v_and_b32 v{vT2}, 31, v{vL}"); a(f"v_mul_u32_u24 v{vT2}, {RS}, v{vT2}"); a(f"v_lshl_add_u32 v{vT2}, v{vT}, 4, v{vT2}"); a(f"v_add_u32 v{vT2}, s33, v{vT2}")
    for i in range(4):
        a(f"ds_write_b128 v{vT2}, {vr(BR+4*i,4)} offset:{32*i}"); a(f"ds_write_b128 v{vT2}, {vr(BI+4*i,4)} offset:{128+32*i}")
    a(f"v_bfe_u32 v{vT2}, v{vL}, 2, 2"); a(f"v_lshl_add_u32 v{vT2}, v{vT}, 2, v{vT2}"); a(f"v_mul_u32_u24 v{vT2}, {RS}, v{vT2}")
    a(f"v_bfe_u32 v{tmp}, v{vL}, 4, 1"); a(f"v_lshl_add_u32 v{vT2}, v{tmp}, 5, v{vT2}")
    a(f"v_and_b32 v{tmp}, 1, v{vL}"); a(f"v_lshl_add_u32 v{vT2}, v{tmp}, 4, v{vT2}")
    a(f"v_bfe_u32 v{tmp}, v{vL}, 1, 1"); a(f"v_lshl_add_u32 v{vT2}, v{tmp}, 3, v{vT2}"); a(f"v_add_u32 v{vT2}, s33, v{vT2}")
    a(f"v_mul_f32 v{tmp+2}, {fl(1/2048)}, v{vK}"); a(f"v_mul_f32 v{tmp+3}, 4.0, v{vG+3}"); a(f"v_mul_f32 v{tmp+3}, v{tmp+3}, v{tmp+2}")
    sincos16(a, tmp + 2, tmp + 3, lambda r: rho(0, r), TC, TS, tmp)
    a("s_waitcnt lgkmcnt(0)")
    for part, A_ in ((0, AR), (1, AI)):
        for tile in range(2):
            for t2 in range(2):
                for jj in range(2):
                    a(f"ds_read_b64_tr_b16 {vr(A_+8*tile+4*t2+2*jj,2)}, v{vT2} offset:{(16*t2+8*jj)*RS + part*128 + tile*64}")
    f32consts(a, vL, C, S, NS, DR, tmp)
    a(f"v_mul_f32 v{tmp+2}, {fl(1/64)}, v{tmp+2}")
    a(f"v_lshl_add_u32 v{tmp+3}, v{vT}, 3, s32"); a(f"v_cvt_f32_u32 v{tmp+3}, v{tmp+3}"); a(f"v_mul_f32 v{tmp+3}, v{tmp+3}, v{tmp+2}")
    sincos16(a, tmp + 2, tmp + 3, lambda r: 2 * rho(0, r), UC, US, tmp)
    a(f"s_lshl_b32 s33, s{sWave}, 12"); a(f"s_add_u32 s33, s33, {XB}")
    a(f"v_lshl_add_u32 v{vW}, v{vL}, 4, s33")
    a(f"s_lshl_b32 s33, s{sWave}, 8"); a(f"s_add_u32 s33, s33, {XB}")
    a(f"v_lshl_add_u32 v{vR0}, v{vL}, 2, s33")
    a("s_cmp_eq_u32 s2, 0"); a("s_cselect_b32 s33, 8192, 0")
    a(f"v_bfe_u32 v{tmp}, v{vL}, 1, 1"); a(f"v_mul_u32_u24 v{tmp}, s33, v{tmp}")
    a(f"v_sub_u32 v{vR1}, v{vR0}, v{tmp}"); a(f"v_add_u32 v{vR1}, 8192, v{vR1}"); a(f"v_add_u32 v{vR0}, v{vR0}, v{tmp}")
    a(f"s_lshl_b32 s33, s{sWave}, 4")
    a(f"v_lshrrev_b32 v{tmp}, 2, v{vL}"); a(f"v_add_u32 v{tmp}, s33, v{tmp}")
    a(f"v_mul_u32_u24 v{vSt}, {ZS}, v{tmp}"); a(f"v_and_b32 v{tmp}, 3, v{vL}"); a(f"v_lshl_add_u32 v{vSt}, v{tmp}, 4, v{vSt}")
    a("s_lshl_b32 s42, s2, 6")
    for i in range(1, 4): a(f"s_add_u32 s{42+i}, s42, {i*64*ZS}")
    stamp(a, opt, 1)
    for i in range(4):
        a(f"s_waitcnt vmcnt({8-i})")
        mfma(a, DR, X + 4 * i, BR + 4 * i, i == 0); mfma(a, DI, X + 4 * i, BI + 4 * i, i == 0)
    stamp(a, opt, 2)
    cmul_pack(a, DR, DI, TC, TS, False, PR, PI, tmp)
    cstage(a, DR, DI, PR, PI, C, S, NS, True, False)
    a("s_waitcnt vmcnt(1)")
    for r in range(16):
        a(f"v_lshlrev_b32 v{TC+r}, 16, v{W+r}"); a(f"v_and_b32 v{TS+r}, 0xffff0000, v{W+r}")
    cmul_pack(a, DR, DI, TC, TS, True, PR, PI, tmp)
    cstage(a, DR, DI, PR, PI, C, S, NS, False, True)
    cmul_pack(a, DR, DI, UC, US, True, PR, PI, tmp)
    a("s_waitcnt lgkmcnt(0)")
    for t2 in range(2):
        for tile, D in ((0, DR), (1, DI)): mfma(a, D, AR + 8 * tile + 4 * t2, PR + 4 * t2, t2 == 0)
        for tile, D in ((0, DR), (1, DI)): mfma(a, D, AI + 8 * tile + 4 * t2, PI + 4 * t2, False)
    a(f"s_lshr_b32 s33, s{sWave}, 1"); a("s_or_b32 s33, s33, s2"); a("s_cmp_lg_u32 s33, 0")
    a("s_nop 9")
    a(f"s_cbranch_scc1 L_{name}_nofix")
    for D in (DR, DI):
        for r in (0, 1, 2, 3, 8, 9, 10, 11):
            a(f"v_add_f32 v{D+r+4}, v{D+r}, v{D+r+4}"); a(f"v_mul_f32 v{D+r+4}, 0.5, v{D+r+4}"); a(f"v_mov_b32 v{D+r}, 0")
    a(f"L_{name}_nofix:")
    for i in range(4):
        D = (DR, DI)[i >> 1] + 8 * (i & 1)
        for p in range(4): a(f"v_cvt_pk_bf16_f32 v{X+4*i+p}, v{D+2*p}, v{D+2*p+1}")
        a(f"ds_write_b128 v{vW}, {vr(X+4*i,4)} offset:{1024*i}")
    a("s_waitcnt lgkmcnt(0)"); a("s_barrier")
    for i in range(4):
        a(f"ds_read2st64_b32 {vr(X+4*i,2)}, v{vR0} offset0:{4*i} offset1:{4*i+16}")
        a(f"ds_read2st64_b32 {vr(X+4*i+2,2)}, v{vR1} offset0:{4*i} offset1:{4*i+16}")
    for i in range(4):
        a(f"s_waitcnt lgkmcnt({2*(3-i)})")
        a(f"buffer_store_dwordx4 {vr(X+4*i,4)}, v{vSt}, s[12:15], s{42+i} offen {opt.get('sf','sc1')}")
    stamp(a, opt, 3)
    stamp_out(a, opt, 4, opt.get("slot", 0), tmp)
    a(f"L_{name}_end:")
    a("s_endpgm")
    return L, XB + 16384, R.n

def k3(name, opt):
    L = []; a = L.append
    R = RA(1)
    vL, vT, vT2, vA, vA7, vX = R(), R(), R(), R(), R(), R()
    tmp = R(8, 2); V = R(32, 4); X = R(16, 4)
    BR, BI = R(32, 4), R(32, 4)
    C, S, NS = R(8, 4), R(8, 4), R(8, 4)
    TC, TS = R(16, 2), R(16, 2)
    PR, PI = R(8, 4), R(8, 4); DR, DI = R(16, 4), R(16, 4)
    vW, vRd, vSt, vPF = R(), R(), R(), R()
    AS = 32 * 528
    a(f"L_{name}:")
    stamp(a, opt, 0)
    a("s_cmp_ge_u32 s2, 256"); a(f"s_cbranch_scc1 L_{name}_end")
    a("s_load_dwordx2 s[36:37], s[0:1], 0")
    a("s_load_dwordx2 s[6:7], s[0:1], 72")
    lane_wave(a, vL, vT)
    a(f"v_and_b32 v{vT2}, 31, v{vL}"); a(f"v_lshrrev_b32 v{vT}, 5, v{vL}")
    a(f"v_sub_u32 v{vA}, 32, v{vT2}"); a(f"v_cmp_eq_u32 vcc, 0, v{vT}")
    a(f"v_lshlrev_b32 v{vX}, 6, v{vT2}"); a(f"v_lshl_add_u32 v{vX}, v{vT}, 5, v{vX}")
    a(f"v_cndmask_b32 v{vA}, v{vA}, v{vT2}, vcc")
    a(f"v_add_u32 v{vA7}, 224, v{vA}"); a(f"v_and_b32 v{vA7}, 255, v{vA7}")
    a(f"v_lshlrev_b32 v{vA}, 6, v{vA}"); a(f"v_lshl_add_u32 v{vA}, v{vT}, 5, v{vA}")
    a(f"v_lshlrev_b32 v{vA7}, 6, v{vA7}"); a(f"v_lshl_add_u32 v{vA7}, v{vT}, 5, v{vA7}")
    a(f"s_lshr_b32 s32, s{sWave}, 1"); a(f"s_and_b32 s33, s{sWave}, 1")
    a(f"s_mul_i32 s30, s2, {ZS}"); a("s_lshl_b32 s31, s32, 4"); a("s_add_u32 s30, s30, s31")
    a("s_and_b32 s38, s2, 31"); a("s_lshr_b32 s31, s2, 5"); a("s_lshl_b32 s31, s31, 6"); a("s_add_u32 s38, s38, s31")
    a("s_lshl_b32 s31, s32, 5"); a("s_add_u32 s38, s38, s31"); a("s_lshl_b32 s31, s33, 10"); a("s_add_u32 s38, s38, s31")
    a("s_lshl_b32 s38, s38, 11"); a(f"s_add_u32 s39, s38, {MB}")
    a("s_waitcnt lgkmcnt(0)")
    ws_srd(a, 8, "s4", 256 * ZS)
    for i in range(7):
        if i and i % 2 == 0: a(f"s_add_u32 s31, s30, {2048*i}")
        a(f"buffer_load_dwordx4 {vr(V+4*i,4)}, v{vA}, s[8:11], s{30 if i < 2 else 31} offen offset:{2048*(i&1)}")
    a(f"buffer_load_dwordx4 {vr(V+28,4)}, v{vA7}, s[8:11], s30 offen")
    a("s_add_u32 s40, s6, s35"); a("s_addc_u32 s41, s7, 0")
    a("s_cmp_eq_u32 s3, 1"); a("s_cselect_b32 s16, s36, s40"); a("s_cselect_b32 s17, s37, s41")
    a("s_and_b32 s17, s17, 0xffff"); a(f"s_mov_b32 s18, {4*MB}"); a("s_mov_b32 s19, 0x20000")
    for q in range(2):
        for e in range(2): a(f"buffer_load_dwordx4 {vr(X+8*q+4*e,4)}, v{vX}, s[16:19], s{38+q} offen offset:{16*e}")
    pf_addr(a, vPF); pf_issue(a, vPF)
    ws_srd(a, 12, "s5", 4 * MB); ws_srd(a, 20, "s34", 4 * MB)
    a(f"v_bfe_u32 v{tmp}, v{vL}, 2, 1"); a(f"v_lshlrev_b32 v{tmp}, 4, v{tmp}")
    a(f"v_bfe_u32 v{tmp+1}, v{vL}, 3, 2"); a(f"v_lshl_add_u32 v{tmp}, v{tmp+1}, 2, v{tmp}")
    a(f"v_and_b32 v{tmp+1}, 3, v{vL}"); a(f"v_add_u32 v{tmp}, v{tmp}, v{tmp+1}")
    a(f"v_cvt_f32_u32 v{tmp+4}, v{tmp}"); a(f"v_mul_f32 v{tmp+4}, {fl(1/32)}, v{tmp+4}")
    a(f"v_cvt_f32_u32 v{tmp+5}, v{vT}")
    a(f"v_fma_f32 v{tmp+2}, v{tmp+5}, -2.0, 1.0"); a(f"v_mul_f32 v{tmp+2}, v{tmp+2}, v{tmp+4}")
    a(f"v_mul_f32 v{tmp+3}, v{tmp+5}, v{tmp+4}"); a(f"v_mul_f32 v{tmp+3}, {fl(31.0)}, v{tmp+3}")
    sincos16(a, tmp + 2, tmp + 3, lambda r: r, DR, DI, tmp)
    a("s_cmp_eq_u32 s33, 1"); a("s_cselect_b32 s31, 0x80008000, 0")
    for i in range(8):
        for js in range(2):
            x = i + 8 * js
            a(f"v_cvt_pk_bf16_f32 v{BR+4*i+2*js}, v{DR+x}, -v{DI+x}"); a(f"v_cvt_pk_bf16_f32 v{BI+4*i+2*js}, v{DI+x}, v{DR+x}")
            a(f"v_xor_b32 v{BR+4*i+2*js+1}, s31, v{BR+4*i+2*js}"); a(f"v_xor_b32 v{BI+4*i+2*js+1}, s31, v{BI+4*i+2*js}")
    a(f"v_mul_f32 v{tmp+2}, {fl(1/32)}, v{tmp+4}"); a(f"v_mul_f32 v{tmp+3}, 4.0, v{tmp+5}"); a(f"v_mul_f32 v{tmp+3}, v{tmp+3}, v{tmp+2}")
    sincos16(a, tmp + 2, tmp + 3, lambda r: rho(0, r), TC, TS, tmp)
    f32consts(a, vL, C, S, NS, DR, tmp)
    a("s_lshl_b32 s31, s32, 2"); a("s_add_u32 s31, s31, s33"); a("s_lshl_b32 s31, s31, 4")
    a(f"v_mul_u32_u24 v{vW}, 528, v{vT2}"); a(f"v_lshl_add_u32 v{vW}, v{vT}, 8, v{vW}"); a(f"v_add_u32 v{vW}, s31, v{vW}")
    a(f"s_mul_i32 s31, s{sWave}, 1056")
    a(f"v_mul_u32_u24 v{vRd}, 528, v{vT}"); a(f"v_lshl_add_u32 v{vRd}, v{vT2}, 4, v{vRd}"); a(f"v_add_u32 v{vRd}, s31, v{vRd}")
    a(f"v_lshrrev_b32 v{vSt}, 3, v{vL}"); a(f"v_lshlrev_b32 v{vSt}, 8, v{vSt}"); a(f"v_and_b32 v{tmp}, 7, v{vL}"); a(f"v_lshl_add_u32 v{vSt}, v{tmp}, 4, v{vSt}")
    a("s_lshr_b32 s42, s2, 1"); a("s_lshl_b32 s42, s42, 15"); a("s_and_b32 s31, s2, 1"); a("s_lshl_b32 s31, s31, 7"); a("s_add_u32 s42, s42, s31")
    a(f"s_lshl_b32 s31, s{sWave}, 11"); a("s_add_u32 s42, s42, s31")
    for i in range(1, 4): a(f"s_add_u32 s{42+i}, s42, {i*8192}")
    stamp(a, opt, 1)
    for i in range(8):
        a(f"s_waitcnt vmcnt({12-i})")
        mfma(a, DR, V + 4 * i, BR + 4 * i, i == 0); mfma(a, DI, V + 4 * i, BI + 4 * i, i == 0)
    stamp(a, opt, 2)
    cmul_pack(a, DR, DI, TC, TS, True, PR, PI, tmp)
    cstage(a, DR, DI, PR, PI, C, S, NS, False, True)
    a("s_waitcnt vmcnt(1)")
    for p in range(16):
        a(f"v_lshlrev_b32 v{V+2*p}, 16, v{X+p}"); a(f"v_and_b32 v{V+2*p+1}, 0xffff0000, v{X+p}")
    a(f"v_mov_b32 v{tmp+4}, {fl(2.0**-22)}")
    a(f"v_lshlrev_b32 v{vA}, 4, v{vL}")
    for q, D in ((0, DR), (1, DI)):
        for p in range(8):
            a(f"v_pk_fma_f32 {vr(D+2*p,2)}, {vr(D+2*p,2)}, {vr(tmp+4,2)}, {vr(V+16*q+2*p,2)} op_sel_hi:[1,0,1]")
            a(f"v_cvt_pk_bf16_f32 v{X+8*q+p}, v{D+2*p}, v{D+2*p+1}")
            if p == 0:
                a(f"v_pk_mul_f32 {vr(BR+4*q+2,2)}, {vr(D,2)}, {vr(D,2)}")
            else:
                a(f"v_pk_add_f32 {vr(BR+4*q,2)}, {vr(D if p == 1 else BR+4*q,2)}, {vr(D+2*p,2)}")
                a(f"v_pk_fma_f32 {vr(BR+4*q+2,2)}, {vr(D+2*p,2)}, {vr(D+2*p,2)}, {vr(BR+4*q+2,2)}")
        for e in range(2):
            if opt.get("xperm"): a(f"buffer_store_dwordx4 {vr(X+8*q+4*e,4)}, v{vA}, s[12:15], s{38+q} offen offset:{1024*e} {opt.get('sf','sc1')}")
            else: a(f"ds_write_b128 v{vW}, {vr(X+8*q+4*e,4)} offset:{128*e + 32*q}")
    for k in range(4): a(f"v_add_f32 v{tmp+k}, v{BR+2*k}, v{BR+2*k+1}")
    reduce4(a, tmp, tmp + 1, tmp + 2, tmp + 3, 46)
    ln_coef(a, 46, 47, tmp, tmp + 2); ln_coef(a, 48, 49, tmp + 4, tmp + 6)
    for q, D in ((0, DR), (1, DI)):
        for p in range(8):
            a(f"v_pk_fma_f32 {vr(D+2*p,2)}, {vr(D+2*p,2)}, {vr(tmp+4*q+2,2)}, {vr(tmp+4*q,2)} op_sel_hi:[1,0,0]")
            a(f"v_cvt_pk_bf16_f32 v{V+8*q+p}, v{D+2*p}, v{D+2*p+1}")
        for e in range(2): a(f"ds_write_b128 v{vW}, {vr(V+8*q+4*e,4)} offset:{AS + 128*e + 32*q}")
    a("s_waitcnt lgkmcnt(0)"); a("s_barrier")
    arrs = (1,) if opt.get("xperm") else (1, 0)
    for arr in arrs:
        for i in range(4): a(f"ds_read_b128 {vr(BR+16*arr+4*i,4)}, v{vRd} offset:{arr*AS + i*8*528}")
    n = 4 * len(arrs) - 1
    for arr in arrs:
        for i in range(4):
            a(f"s_waitcnt lgkmcnt({n})"); n -= 1
            a(f"buffer_store_dwordx4 {vr(BR+16*arr+4*i,4)}, v{vSt}, s[{20 if arr else 12}:{23 if arr else 15}], s{42+i} offen {opt.get('sf','sc1')}")
    stamp(a, opt, 3)
    stamp_out(a, opt, 4, opt.get("slot", 0), tmp)
    a(f"L_{name}_end:")
    a("s_endpgm")
    return L, 2 * AS, R.n
```

```python
from common import *

MB = 1 << 20
WS = {}
_o = 0
for _n, _sz in (("Z1", 5), ("V1", 5), ("X1", 4), ("XN1", 4), ("H1", 15), ("X2", 4), ("Z2", 5), ("V2", 5), ("X3", 4), ("XN2", 4), ("H2", 15),
                ("WT", 4), ("P1", 16), ("P2", 16)):
    WS[_n] = _o * MB; _o += _sz

S_A, S_B, S_O, S_R = 8, 12, 16, 20
sAoff, sBoff, sM0, sBuf, sLoop, sWave, sT0, sT1, sMT, sNT, sRd = 24, 25, 26, 27, 28, 29, 30, 31, 32, 33, 34

class G:
    def __init__(self, **kw):
        self.__dict__.update(kw)

def core(c, a):
    MF, NT, KS, T, DA, NA, NB, PD, RING = c.MF, c.NT, c.KS, c.T, c.DA, c.NA, c.NB, c.PD, c.RING
    DB = NB - 2
    ASZ = MF * KS * 4
    AB, BB = 0, NA * ASZ
    assert BB + RING * KS * 4 <= 256
    def areg(t, i, ks): r = AB + (t % NA) * ASZ + (i * KS + ks) * 4; return f"a[{r}:{r+3}]"
    def bslot(t, j): return BB + ((t * NT + j) % RING) * KS * 4
    def aloads(t):
        L = []
        for ks in range(KS):
            for i in range(MF):
                L.append([Op(f"buffer_load_dwordx4 {areg(t,i,ks)}, v{c.vA+i}, s[{S_A}:{S_A+3}], s{sAoff} offen offset:{ks*1024}", "vm", ("A", t))])
        L[-1].append(Op(f"s_add_u32 s{sAoff}, s{sAoff}, {KS*1024}"))
        return L
    def bdma(t):
        L = []
        for q in range(c.NDMA):
            grp = []
            if q % 4 == 0:
                grp.append(Op(f"s_add_u32 m0, s{sM0}, {(q//4)*4*c.DSTR}"))
                L.append(grp); grp = []
            grp.append(Op(f"buffer_load_dwordx4 v{c.vD+q}, s[{S_B}:{S_B+3}], s{sBoff} offen offset:{(q%4)*c.DSTR} lds", "vm", ("B", t)))
            L.append(grp)
        L.append([Op(f"s_add_u32 s{sBoff}, s{sBoff}, {c.BADV}")])
        L.append([Op(f"s_add_u32 s{sM0}, s{sM0}, {c.BST}")])
        L.append([Op(f"s_cmp_ge_u32 s{sM0}, {NB*c.BST}"), Op(f"s_cselect_b32 s{sT0}, {NB*c.BST}, 0")])
        L.append([Op(f"s_sub_u32 s{sM0}, s{sM0}, s{sT0}")])
        return L
    def reads(t, j):
        L = []
        for ks in range(KS):
            for hf in range(2):
                r = bslot(t, j) + ks * 4 + hf * 2
                L.append(Op(f"ds_read_b64_tr_b16 a[{r}:{r+1}], v{c.vR} offset:{c.roff(j, ks, hf)}", "ds", ("R", t, j)))
        return L
    def rd_advance():
        return [Op(f"s_add_u32 s{sRd}, s{sRd}, {c.BST}"), Op(f"s_cmp_ge_u32 s{sRd}, {NB*c.BST}"), Op(f"s_cselect_b32 s{sRd}, 0, s{sRd}")]
    pro = []
    for t in range(max(DA, DB)):
        if t < DB and t < T:
            for g in bdma(t):
                pro += g
                if g[0].text.startswith("s_add_u32 m0"): pro.append(Op("s_nop 0"))
        if t < DA and t < T:
            for g in aloads(t): pro += g
    for r in range(4 * MF * NT): pro.append(Op(f"v_mov_b32 v{r}, 0"))
    pro += c.pro_extra()
    pro.append(Op("", "wvm", ("B", 0)))
    pro.append(Op("s_barrier"))
    for j in range(PD): pro += reads(0, j)
    stages = []
    NM = MF * KS
    for t in range(T):
        fill = {}
        pre = {}
        def add(d, idx, ops): d.setdefault(idx, []).extend(ops)
        add(pre, 0, [Op("", "wvm", ("A", t))])
        for j in range(NT):
            add(pre, j * NM, [Op("", "wds", ("R", t, j))])
            tt, jj = (t, j + PD) if j + PD < NT else (t + 1, j + PD - NT)
            if tt < T:
                rr = reads(tt, jj)
                first = 0
                if tt > t and jj == 0:
                    add(fill, j * NM - 3, rd_advance()[:1]); add(fill, j * NM - 2, rd_advance()[1:])
                    add(fill, j * NM - 1, [Op(f"v_add_u32 v{c.vR}, s{sRd}, v{c.vR0}")])
                    add(fill, j * NM, [Op("", "wvm", ("B", tt)), Op("s_barrier")])
                for n, r in enumerate(rr):
                    add(fill, j * NM + (n * NM) // len(rr), [r])
        groups = []
        if t + DA < T: groups += aloads(t + DA)
        if t + DB < T: groups += bdma(t + DB)
        lim = NT * NM - 4
        span = int(lim * c.SPAN)
        for n, g in enumerate(groups):
            idx = 1 + (n * span) // max(len(groups), 1)
            if c.MF >= 4: idx |= 1
            add(fill, min(idx, lim), g)
        st = []
        m = 0
        for j in range(NT):
            order = range(MF) if j % 2 == 0 else range(MF - 1, -1, -1)
            for i in order:
                for ks in range(KS):
                    st += pre.get(m, [])
                    d = 4 * (j * MF + i)
                    b = bslot(t, j) + ks * 4
                    st.append(Op(f"v_mfma_f32_16x16x32_bf16 v[{d}:{d+3}], a[{b}:{b+3}], {areg(t,i,ks)}, v[{d}:{d+3}]", "mfma"))
                    st += fill.get(m, [])
                    m += 1
        fixed = []
        for o in st:
            if fixed and fixed[-1].text.startswith("s_add_u32 m0") and o.text.endswith("lds"): fixed.append(Op("s_nop 0"))
            fixed.append(o)
        stages.append(fixed)
    flat = pro + [o for st in stages for o in st]
    resolve_waits(flat)
    for o in pro: a(o.text)
    if c.opt.get("stamp"): stamp(a, c.opt, 1); a("s_waitcnt lgkmcnt(0)")
    import math
    P = NA * (RING // math.gcd(RING, NT)) // math.gcd(NA, RING // math.gcd(RING, NT))
    for l in fold_loop([[o.text for o in st] for st in stages], P, f"L_{c.name}_loop", f"s{sLoop}"): a(l)

def wave_id(a):
    a(f"v_lshrrev_b32 v1, 6, v0")
    a("s_nop 0")
    a(f"v_readfirstlane_b32 s{sWave}, v1")

def gemm1(name, opt):
    L = []; a = L.append
    c = G(name=name, MF=4, NT=14, KS=2, T=16, DA=opt.get("DA", 1), NA=opt.get("NA", 2), NB=opt.get("NB", 4), PD=opt.get("PD", 2), RING=opt.get("RING", 7),
          NDMA=7, DSTR=1024, BST=28672, BADV=64 * 7168, SPAN=opt.get("SPAN", 1.0),
          vA=224, vD=228, vR=235, vR0=236)
    vL, vT, vT2, vS = 237, 238, 239, 240
    c.roff = lambda j, ks, hf: (j & 1) * 14336 + (32 * ks + 8 * hf) * 224 + (j >> 1) * 32
    a(f"L_{name}:")
    stamp(a, opt, 0)
    c.opt = opt
    a("s_cmp_ge_u32 s2, 256")
    a(f"s_cbranch_scc1 L_{name}_end")
    a("s_load_dwordx4 s[36:39], s[0:1], 32")
    a("s_load_dwordx2 s[6:7], s[0:1], 72")
    wave_id(a)
    pf_addr(a, 250)
    a(f"v_and_b32 v{vL}, 63, v0")
    a(f"s_and_b32 s{sT0}, s2, 7"); a(f"s_lshr_b32 s{sT1}, s2, 3")
    if opt.get("map", "4x8") == "4x8":
        a(f"s_and_b32 s{sMT}, s{sT0}, 1"); a(f"s_lshl_b32 s{sMT}, s{sMT}, 2"); a(f"s_and_b32 s{sNT}, s{sT1}, 3"); a(f"s_add_u32 s{sMT}, s{sMT}, s{sNT}")
        a(f"s_lshr_b32 s{sNT}, s{sT0}, 1"); a(f"s_lshl_b32 s{sNT}, s{sNT}, 3"); a(f"s_lshr_b32 s{sT1}, s{sT1}, 2"); a(f"s_add_u32 s{sNT}, s{sNT}, s{sT1}")
    else:
        a(f"s_and_b32 s{sMT}, s{sT1}, 7"); a(f"s_lshl_b32 s{sNT}, s{sT0}, 2"); a(f"s_lshr_b32 s{sT1}, s{sT1}, 3"); a(f"s_add_u32 s{sNT}, s{sNT}, s{sT1}")
    a(f"v_lshlrev_b32 v{vT}, 4, v{vL}")
    a(f"s_lshl_b32 s{sT0}, s{sWave}, 17")
    a(f"v_add_u32 v{c.vA}, s{sT0}, v{vT}")
    for i in range(1, 4): a(f"v_add_u32 v{c.vA+i}, {i*32768}, v{c.vA}")
    a(f"s_lshl_b32 s{sAoff}, s{sMT}, 19")
    a(f"s_and_b32 s{sT0}, s{sWave}, 1"); a(f"s_mul_i32 s{sT0}, s{sT0}, 448")
    a(f"s_movk_i32 s{sT1}, 4682")
    a(f"s_mul_i32 s{sBoff}, s{sNT}, 224")
    for q in range(7):
        d = c.vD + q
        a(f"v_add_u32 v{vT}, s{sT0}, v{vL}")
        if q: a(f"v_add_u32 v{vT}, {q*64}, v{vT}")
        a(f"v_mul_u32_u24 v{vT2}, s{sT1}, v{vT}")
        a(f"v_lshrrev_b32 v{vT2}, 16, v{vT2}")
        a(f"v_mul_u32_u24 v{d}, 14, v{vT2}")
        a(f"v_sub_u32 v{vT}, v{vT}, v{d}")
        a(f"v_and_b32 v{d}, 0x33, v{vT2}")
        a(f"v_and_b32 v{vS}, 4, v{vT2}"); a(f"v_lshl_add_u32 v{d}, v{vS}, 1, v{d}")
        a(f"v_and_b32 v{vS}, 8, v{vT2}"); a(f"v_lshrrev_b32 v{vS}, 1, v{vS}"); a(f"v_add_u32 v{d}, v{d}, v{vS}")
        a(f"v_mul_u32_u24 v{d}, 7168, v{d}")
        a(f"v_lshl_add_u32 v{d}, v{vT}, 4, v{d}")
        if q % 4: a(f"v_subrev_u32 v{d}, {(q%4)*1024}, v{d}")
    a(f"s_mul_i32 s{sM0}, s{sWave}, 7168")
    a(f"v_lshrrev_b32 v{vT}, 5, v{vL}"); a(f"v_lshlrev_b32 v{vT}, 4, v{vT}")
    a(f"v_bfe_u32 v{vT2}, v{vL}, 2, 3"); a(f"v_add_u32 v{vT}, v{vT}, v{vT2}")
    a(f"v_mul_u32_u24 v{vT}, 224, v{vT}")
    a(f"v_and_b32 v{vT2}, 3, v{vL}"); a(f"v_lshl_add_u32 v{c.vR0}, v{vT2}, 3, v{vT}")
    a(f"v_mov_b32 v{c.vR}, v{c.vR0}")
    a(f"s_mov_b32 s{sRd}, 0")
    a("s_waitcnt lgkmcnt(0)")
    a(f"s_add_u32 s{S_A}, s6, s4"); a(f"s_addc_u32 s{S_A+1}, s7, 0"); a(f"s_and_b32 s{S_A+1}, s{S_A+1}, 0xffff"); a(f"s_mov_b32 s{S_A+2}, {4*MB}"); a(f"s_mov_b32 s{S_A+3}, 0x20000")
    a(f"s_add_u32 s{S_O}, s6, s5"); a(f"s_addc_u32 s{S_O+1}, s7, 0"); a(f"s_and_b32 s{S_O+1}, s{S_O+1}, 0xffff"); a(f"s_mov_b32 s{S_O+2}, {2048*3584*2}"); a(f"s_mov_b32 s{S_O+3}, 0x20000")
    a(f"s_cmp_ge_u32 s{sWave}, 2")
    a(f"s_cselect_b32 s{S_B}, s38, s36"); a(f"s_cselect_b32 s{S_B+1}, s39, s37"); a(f"s_and_b32 s{S_B+1}, s{S_B+1}, 0xffff"); a(f"s_mov_b32 s{S_B+2}, {1024*7168}"); a(f"s_mov_b32 s{S_B+3}, 0x20000")
    def pro_extra():
        P = []
        P.append(Op(f"v_bfe_u32 v{vT}, v{vL}, 4, 1")); P.append(Op(f"v_mul_u32_u24 v{vT}, 114688, v{vT}"))
        P.append(Op(f"v_lshrrev_b32 v{vT2}, 5, v{vL}")); P.append(Op(f"v_lshl_add_u32 v{vT}, v{vT2}, 8, v{vT}"))
        P.append(Op(f"v_and_b32 v{vT2}, 15, v{vL}")); P.append(Op(f"v_lshl_add_u32 v{vS}, v{vT2}, 4, v{vT}"))
        P.append(Op(f"v_add_u32 v{vS+1}, {2*114688}, v{vS}"))
        return P
    c.pro_extra = pro_extra
    core(c, a)
    stamp(a, opt, 2)
    pf_issue(a, 250)
    a(f"s_lshl_b32 s{sT0}, s{sMT}, 2"); a(f"s_add_u32 s{sT0}, s{sT0}, s{sWave}"); a(f"s_mul_i32 s{sT0}, s{sT0}, {4*114688}")
    a(f"s_mul_i32 s{sT1}, s{sNT}, {14*256}"); a(f"s_add_u32 s{sT0}, s{sT0}, s{sT1}")
    a("s_nop 7")
    sf = opt.get("sf", "sc1")
    for j in range(7):
        for ip in range(2):
            g0 = 4 * ((2 * j) * 4 + 2 * ip); u0 = 4 * ((2 * j + 1) * 4 + 2 * ip)
            for r in range(0, 8, 2): a(f"v_pk_mul_f32 v[{g0+r}:{g0+r+1}], v[{g0+r}:{g0+r+1}], v[{u0+r}:{u0+r+1}]")
            for r in range(4): a(f"v_cvt_pk_bf16_f32 v{u0+r}, v{g0+2*r}, v{g0+2*r+1}")
            a("s_nop 1")
            a(f"v_permlane16_swap_b32 v{u0}, v{u0+2}"); a(f"v_permlane16_swap_b32 v{u0+1}, v{u0+3}")
            a(f"buffer_store_dwordx4 v[{u0}:{u0+3}], v{vS+ip}, s[{S_O}:{S_O+3}], s{sT0} offen offset:{j*512} {sf}")
    stamp_out(a, opt, 3, opt.get("slot", 0), vT)
    a(f"L_{name}_end:")
    a("s_endpgm")
    return L, c.NB * c.BST

def gemm2(name, opt):
    L = []; a = L.append
    SK = opt.get("SK", 1)
    MF, NT, KS = {1: (2, 4, 4), 2: (2, 8, opt.get("KS", 2)), 4: (4, 8, 2)}[SK]
    T = 3584 // SK // (32 * KS)
    RB = NT * 32; RPI = 1024 // RB; LPR = RB // 16
    NDMA = KS * NT // 4
    nacc = 4 * MF * NT
    c = G(name=name, MF=MF, NT=NT, KS=KS, T=T, DA=opt.get("DA", 2), NA=opt.get("NA", 3), NB=opt.get("NB", 4), PD=opt.get("PD", 2), RING=opt.get("RING", 4),
          NDMA=NDMA, DSTR=1056, BST=KS * NT * 1056, BADV=32 * KS * 2048, SPAN=opt.get("SPAN", 1.0),
          vA=nacc, vD=nacc + 4, vR=nacc + 12, vR0=nacc + 13, opt=opt)
    vL, vT, vT2, vS, vX = nacc + 14, nacc + 15, nacc + 16, nacc + 18, nacc + 24
    c.roff = lambda j, ks, hf: ((ks * 4) // RPI) * 8 * 1056 + ((ks * 4) % RPI + hf) * RB + j * 32
    sKH = 42
    a(f"L_{name}:")
    stamp(a, opt, 0)
    a("s_cmp_ge_u32 s2, 256")
    a(f"s_cbranch_scc1 L_{name}_end")
    a("s_load_dwordx4 s[36:39], s[0:1], 48")
    a("s_load_dwordx2 s[6:7], s[0:1], 72")
    wave_id(a)
    pf_addr(a, 250)
    a(f"v_and_b32 v{vL}, 63, v0")
    a(f"s_and_b32 s{sT0}, s2, 7"); a(f"s_lshr_b32 s{sT1}, s2, 3")
    if SK == 1:
        if opt.get("map", "4x8") == "4x8":
            a(f"s_lshr_b32 s{sMT}, s{sT0}, 1"); a(f"s_lshl_b32 s{sMT}, s{sMT}, 2"); a(f"s_and_b32 s{sNT}, s{sT1}, 3"); a(f"s_add_u32 s{sMT}, s{sMT}, s{sNT}")
            a(f"s_and_b32 s{sNT}, s{sT0}, 1"); a(f"s_lshl_b32 s{sNT}, s{sNT}, 3"); a(f"s_lshr_b32 s{sT1}, s{sT1}, 2"); a(f"s_add_u32 s{sNT}, s{sNT}, s{sT1}")
        else:
            a(f"s_lshl_b32 s{sMT}, s{sT0}, 1"); a(f"s_and_b32 s{sNT}, s{sT1}, 1"); a(f"s_add_u32 s{sMT}, s{sMT}, s{sNT}")
            a(f"s_lshr_b32 s{sNT}, s{sT1}, 1")
        a(f"s_mov_b32 s{sKH}, 0")
    elif SK == 2:
        a(f"s_and_b32 s{sKH}, s{sT0}, 1")
        a(f"s_lshr_b32 s{sMT}, s{sT0}, 1"); a(f"s_lshl_b32 s{sMT}, s{sMT}, 2"); a(f"s_and_b32 s{sNT}, s{sT1}, 3"); a(f"s_add_u32 s{sMT}, s{sMT}, s{sNT}")
        a(f"s_lshr_b32 s{sNT}, s{sT1}, 2")
    else:
        a(f"s_and_b32 s{sKH}, s{sT0}, 3")
        a(f"s_lshr_b32 s{sMT}, s{sT0}, 2"); a(f"s_lshl_b32 s{sMT}, s{sMT}, 2"); a(f"s_and_b32 s{sNT}, s{sT1}, 3"); a(f"s_add_u32 s{sMT}, s{sMT}, s{sNT}")
        a(f"s_lshr_b32 s{sNT}, s{sT1}, 2")
    a(f"v_lshlrev_b32 v{vT}, 4, v{vL}")
    a(f"s_mul_i32 s{sT0}, s{sWave}, {MF*114688}")
    a(f"v_add_u32 v{c.vA}, s{sT0}, v{vT}")
    for i in range(1, MF): a(f"v_add_u32 v{c.vA+i}, {i*114688}, v{c.vA}")
    a(f"s_mul_i32 s{sAoff}, s{sMT}, {4*MF*114688}")
    a(f"s_mul_i32 s{sT0}, s{sKH}, {3584//SK*32}"); a(f"s_add_u32 s{sAoff}, s{sAoff}, s{sT0}")
    a(f"s_mul_i32 s{sBoff}, s{sNT}, {RB}")
    a(f"s_mul_i32 s{sT0}, s{sKH}, {3584//SK*2048}"); a(f"s_add_u32 s{sBoff}, s{sBoff}, s{sT0}")
    lg = LPR.bit_length() - 1
    a(f"v_lshrrev_b32 v{vT}, {lg+1}, v{vL}"); a(f"v_lshlrev_b32 v{vT}, 4, v{vT}")
    a(f"v_bfe_u32 v{vT2}, v{vL}, {lg}, 1"); a(f"v_lshl_add_u32 v{vT}, v{vT2}, 2, v{vT}")
    a(f"v_lshlrev_b32 v{vT}, 11, v{vT}")
    a(f"v_and_b32 v{vT2}, {LPR-1}, v{vL}"); a(f"v_lshl_add_u32 v{vT}, v{vT2}, 4, v{vT}")
    if NDMA == 4:
        a(f"s_lshr_b32 s{sT0}, s{sWave}, 1"); a(f"s_mul_i32 s{sT0}, s{sT0}, {8*RPI*2048}")
        a(f"s_and_b32 s{sT1}, s{sWave}, 1"); a(f"s_mul_i32 s{sT1}, s{sT1}, {8*2048}"); a(f"s_add_u32 s{sT0}, s{sT0}, s{sT1}")
    else:
        assert NDMA == 8
        a(f"s_mul_i32 s{sT0}, s{sWave}, {8*RPI*2048}")
    a(f"v_add_u32 v{c.vD}, s{sT0}, v{vT}")
    for q in range(1, NDMA): a(f"v_add_u32 v{c.vD+q}, {(8*(q>>2)+(q&3))*2048 - (q%4)*1056}, v{c.vD}")
    a(f"s_mul_i32 s{sM0}, s{sWave}, {NDMA*1056}")
    a(f"v_bfe_u32 v{vT}, v{vL}, 2, 3"); a(f"v_mul_u32_u24 v{vT}, 1056, v{vT}")
    a(f"v_lshrrev_b32 v{vT2}, 5, v{vL}"); a(f"v_mul_u32_u24 v{vT2}, {2*RB}, v{vT2}"); a(f"v_add_u32 v{vT}, v{vT}, v{vT2}")
    a(f"v_and_b32 v{vT2}, 3, v{vL}"); a(f"v_lshl_add_u32 v{c.vR0}, v{vT2}, 3, v{vT}")
    a(f"v_mov_b32 v{c.vR}, v{c.vR0}")
    a(f"s_mov_b32 s{sRd}, 0")
    a("s_waitcnt lgkmcnt(0)")
    a(f"s_add_u32 s{S_A}, s6, s4"); a(f"s_addc_u32 s{S_A+1}, s7, 0"); a(f"s_and_b32 s{S_A+1}, s{S_A+1}, 0xffff"); a(f"s_mov_b32 s{S_A+2}, {2048*3584*2}"); a(f"s_mov_b32 s{S_A+3}, 0x20000")
    a(f"s_add_u32 s{S_R}, s6, s5"); a(f"s_addc_u32 s{S_R+1}, s7, 0"); a(f"s_and_b32 s{S_R+1}, s{S_R+1}, 0xffff"); a(f"s_mov_b32 s{S_R+2}, {4*MB}"); a(f"s_mov_b32 s{S_R+3}, 0x20000")
    srd(a, S_B, "s36", "s37", 3584 * 2048)
    a(f"s_mul_i32 s{sT0}, s{sKH}, {4*MB}"); a(f"s_add_u32 s35, s35, s{sT0}")
    a(f"s_add_u32 s40, s6, s35"); a(f"s_addc_u32 s41, s7, 0")
    a("s_cmp_eq_u32 s3, 1")
    a(f"s_cselect_b32 s{S_O}, s38, s40"); a(f"s_cselect_b32 s{S_O+1}, s39, s41"); a(f"s_and_b32 s{S_O+1}, s{S_O+1}, 0xffff"); a(f"s_mov_b32 s{S_O+2}, {4*MB}"); a(f"s_mov_b32 s{S_O+3}, 0x20000")
    def pro_extra():
        P = []
        def p(t, k="x", tag=None): P.append(Op(t, k, tag))
        p(f"s_lshl_b32 s{sT0}, s{sMT}, 2"); p(f"s_add_u32 s{sT0}, s{sT0}, s{sWave}"); p(f"s_mul_i32 s{sT0}, s{sT0}, {MF*2}")
        p(f"s_lshr_b32 s{sT1}, s{sT0}, 5"); p(f"s_lshl_b32 s{sT1}, s{sT1}, 6"); p(f"s_and_b32 s43, s{sT0}, 31"); p(f"s_add_u32 s{sT1}, s{sT1}, s43")
        p(f"s_lshl_b32 s{sT1}, s{sT1}, 11"); p(f"s_mul_i32 s43, s{sNT}, {RB}"); p(f"s_add_u32 s43, s43, s{sT1}")
        p(f"v_bfe_u32 v{vT}, v{vL}, 3, 1")
        p(f"v_bfe_u32 v{vT2}, v{vL}, 2, 1"); p(f"v_lshl_add_u32 v{vT}, v{vT2}, 5, v{vT}")
        p(f"v_bfe_u32 v{vT2}, v{vL}, 1, 1"); p(f"v_lshl_add_u32 v{vT}, v{vT2}, 9, v{vT}")
        p(f"v_and_b32 v{vT2}, 1, v{vL}"); p(f"v_lshl_add_u32 v{vT}, v{vT2}, 10, v{vT}")
        p(f"v_lshlrev_b32 v{vT}, 11, v{vT}")
        p(f"v_bfe_u32 v{vT2}, v{vL}, 4, 1"); p(f"v_lshl_add_u32 v{vT}, v{vT2}, 5, v{vT}")
        p(f"v_lshrrev_b32 v{vT2}, 5, v{vL}"); p(f"v_lshl_add_u32 v{vS}, v{vT2}, 4, v{vT}")
        for i in range(1, MF): p(f"v_add_u32 v{vS+i}, {i*2*2048}, v{vS}")
        if SK == 1:
            p(f"s_mul_i32 s{sT0}, s{sT0}, 16384"); p(f"s_mul_i32 s{sT1}, s{sNT}, {NT*2*256}"); p(f"s_add_u32 s{sT0}, s{sT0}, s{sT1}")
            p(f"v_bfe_u32 v{vT}, v{vL}, 4, 1"); p(f"v_lshlrev_b32 v{vT}, 9, v{vT}")
            p(f"v_lshrrev_b32 v{vT2}, 5, v{vL}"); p(f"v_lshl_add_u32 v{vT}, v{vT2}, 8, v{vT}")
            p(f"v_and_b32 v{vT2}, 15, v{vL}"); p(f"v_lshl_add_u32 v{vT}, v{vT2}, 4, v{vT}")
            p(f"v_add_u32 v{vT2}, 32768, v{vT}")
            for i in range(MF):
                for jp in range(NT // 2):
                    r = vX + 4 * (i * (NT // 2) + jp)
                    p(f"buffer_load_dwordx4 v[{r}:{r+3}], v{vT+i}, s[{S_R}:{S_R+3}], s{sT0} offen offset:{jp*1024}", "vm", "X")
        return P
    c.pro_extra = pro_extra
    core(c, a)
    stamp(a, opt, 2)
    pf_issue(a, 250)
    sf = opt.get("sf", "sc1")
    a("s_nop 7")
    for i in range(MF):
        for jp in range(NT // 2):
            x0 = 4 * ((2 * jp) * MF + i); y0 = 4 * ((2 * jp + 1) * MF + i)
            if SK == 1:
                r = vX + 4 * (i * (NT // 2) + jp)
                a(f"v_permlane16_swap_b32 v{r}, v{r+2}"); a(f"v_permlane16_swap_b32 v{r+1}, v{r+3}")
                for n, d in enumerate((x0, x0 + 2, y0, y0 + 2)):
                    a(f"v_lshlrev_b32 v{vT2}, 16, v{r+n}"); a(f"v_and_b32 v{vT2+1}, 0xffff0000, v{r+n}")
                    a(f"v_pk_add_f32 v[{d}:{d+1}], v[{d}:{d+1}], v[{vT2}:{vT2+1}]")
            a(f"v_cvt_pk_bf16_f32 v{x0}, v{x0}, v{x0+1}"); a(f"v_cvt_pk_bf16_f32 v{x0+1}, v{x0+2}, v{x0+3}")
            a(f"v_cvt_pk_bf16_f32 v{x0+2}, v{y0}, v{y0+1}"); a(f"v_cvt_pk_bf16_f32 v{x0+3}, v{y0+2}, v{y0+3}")
            a("s_nop 1")
            a(f"v_permlane16_swap_b32 v{x0}, v{x0+2}"); a(f"v_permlane16_swap_b32 v{x0+1}, v{x0+3}")
            a(f"buffer_store_dwordx4 v[{x0}:{x0+3}], v{vS+i}, s[{S_O}:{S_O+3}], s43 offen offset:{jp*64} {sf}")
    stamp_out(a, opt, 3, opt.get("slot", 0), vT)
    a(f"L_{name}_end:")
    a("s_endpgm")
    return L, c.NB * c.BST
```

```python
import sys, json
sys.path.insert(0, "gen")
from common import *
import gemm, fft, hazard
WS = gemm.WS
NAME = "interleave_layers__spectral_gfnet__glu_gated_bilinear__prompt"
HEAD = open("cdna_kernels/" + NAME + ".s.ref").read().split("; Override launch geometry")[0] if len(sys.argv) else ""

def probe_write(k):
    return ["s_memrealtime s[12:13]", "s_cmp_lg_u32 s2, 0", f"s_cbranch_scc1 L_{k}_noprobe", "s_load_dwordx2 s[8:9], s[0:1], 72", "s_waitcnt lgkmcnt(0)",
            f"s_add_u32 s8, s8, {220<<20}", "s_addc_u32 s9, s9, 0", "s_and_b32 s9, s9, 0xffff", "s_mov_b32 s10, 4", "s_mov_b32 s11, 0x20000",
            "v_mov_b32 v1, s12", "v_lshlrev_b32 v2, 2, v0", "buffer_store_dword v1, v2, s[8:11], 0 offen", f"L_{k}_noprobe:"]
def align4(n): return (n + 3) // 4 * 4
def generate(opt, head=True):
    o = lambda k, slot: dict(opt.get(k, {}), stamp=opt.get("stamp", False), slot=slot)
    bodies = {}
    sh = True
    launches = []; text = []
    def add(kname, bname, fn, okey, slot, params, grid, nxt):
        if not sh: bname = kname
        first = bname not in bodies
        if first:
            r = fn(bname, o(okey, slot))
            L = hazard.fix(r[0])
            bodies[bname] = (L, r[1], r[2] if len(r) > 2 else 512)
        L, lds, nv = bodies[bname]
        launches.append(f"; @launch kernel={kname}_kernel grid=({grid},1,1) block=(256,1,1) lds={lds}")
        t = [entry(f"{kname}_kernel")]
        if opt.get("probe", -1) == slot: t += probe_write(kname)
        if opt.get("selfpf", True) and slot == 0:
            t += stub_code_range(f"L_{bname}", f"L_{bname}_end", f"L_{kname}_pc0")
            pf_addr(t.append, 1); pf_issue(t.append, 1)
        t += stub_code_range(f"L_{nxt}", f"L_{nxt}_end", f"L_{kname}_pc")
        if not opt.get("pf", True): t.append("s_mov_b32 s62, 0")
        t.append(f"s_mov_b32 s58, {7340032 if slot in opt.get('wpf', [1, 2, 3]) else 0}")
        if opt.get("stamp"): t.append(f"s_mov_b32 s63, {(200<<20) + slot*65536}")
        t += [f"s_mov_b32 {k}, {v}" for k, v in params.items()]
        if first: t += L
        else: t.append(f"s_branch L_{bname}")
        t.append(kd(f"{kname}_kernel", nv, min(align4(nv), 256)))
        text.append("\n".join(t))
    SK = opt.get("g2", {}).get("SK", 1)
    if SK > 1:
        opt.setdefault("k1", {})["NP"] = SK; opt.setdefault("k3", {})["xperm"] = True
    for ly in (1, 2):
        Z, V, XA, XN, H = WS[f"Z{ly}"], WS[f"V{ly}"], WS["X1" if ly == 1 else "X3"], WS[f"XN{ly}"], WS[f"H{ly}"]
        b = (ly - 1) * 5
        add(f"k1l{ly}", "k1", fft.k1, "k1", b + 0, {"s3": int(ly == 1), "s35": WS["X2"], "s4": Z, "s5": WS["WT"], "s34": 512 if ly == 1 else 256,
            "s50": WS["P1"], "s51": WS["X1"]}, 512 if ly == 1 else 256, "k2")
        add(f"k2l{ly}", "k2", fft.k2, "k2", b + 1, {"s3": Z, "s4": V, "s5": WS["WT"]}, 256, "k3")
        add(f"k3l{ly}", "k3", fft.k3, "k3", b + 2, {"s3": int(ly == 1), "s35": WS["X2"], "s4": V, "s5": XA, "s34": XN}, 256, "g1")
        add(f"g1l{ly}", "g1", gemm.gemm1, "g1", b + 3, {"s4": XN, "s5": H}, 256, "g2")
        if SK == 1: add(f"g2l{ly}", "g2", gemm.gemm2, "g2", b + 4, {"s4": H, "s5": XA, "s3": int(ly == 2), "s35": WS["X2"]}, 256, "k1")
        else: add(f"g2l{ly}", "g2", gemm.gemm2, "g2", b + 4, {"s4": H, "s5": XA, "s3": 0, "s35": WS[f"P{ly}"]}, 256, "k1")
    if SK > 1:
        add("red", "k1", fft.k1, "k1", 10, {"s3": 2, "s35": 0, "s4": 0, "s5": 0, "s34": 256, "s50": WS["P2"], "s51": WS["X3"]}, 256, "k1")
    if "probe" in opt:
        launches.append("; @launch kernel=probe_kernel grid=(1,1,1) block=(64,1,1) lds=0")
        t = [entry("probe_kernel")]
        t += ["s_memrealtime s[12:13]", "s_cmp_lg_u32 s2, 0", "s_cbranch_scc1 L_probe_end", "s_load_dwordx2 s[6:7], s[0:1], 72", "s_waitcnt lgkmcnt(0)",
              f"s_add_u32 s6, s6, {220<<20}", "s_addc_u32 s7, s7, 0", "s_load_dword s8, s[6:7], 0", "s_waitcnt lgkmcnt(0)"]
        if opt["probe"] == 99: t.append("s_mov_b32 s8, s12")
        t += ["L_probe_spin:", "s_memrealtime s[10:11]", "s_waitcnt lgkmcnt(0)", "s_sub_u32 s10, s10, s8", "s_cmp_lt_u32 s10, 20000", "s_cbranch_scc1 L_probe_spin",
              "L_probe_end:", "s_endpgm", kd("probe_kernel", 8, 8)]
        text.append("\n".join(t))
    s = (HEAD if head else "") + "\n".join(launches) + '\n.amdgcn_target "amdgcn-amd-amdhsa--gfx950"\n.text\n' + "\n".join(text)
    return s
if __name__ == "__main__":
    opt = json.loads(sys.argv[2]) if len(sys.argv) > 2 else {}
    fn = sys.argv[1] if len(sys.argv) > 1 else "cdna_kernels/" + NAME + ".s"
    open(fn, "w").write(generate(opt))
```

```python
class Op:
    __slots__ = ("text", "kind", "tag")
    def __init__(self, text, kind="x", tag=None):
        self.text, self.kind, self.tag = text, kind, tag

def kd(name, vgpr, accum, sgpr=96):
    return f""".section .rodata,"a"
.p2align 6
.amdhsa_kernel {name}
  .amdhsa_next_free_vgpr {vgpr}
  .amdhsa_next_free_sgpr {sgpr}
  .amdhsa_accum_offset {accum}
  .amdhsa_group_segment_fixed_size 0
  .amdhsa_kernarg_size 80
  .amdhsa_user_sgpr_count 2
  .amdhsa_user_sgpr_kernarg_segment_ptr 1
  .amdhsa_system_sgpr_workgroup_id_x 1
  .amdhsa_float_denorm_mode_32 3
.end_amdhsa_kernel
.text
"""

def entry(name):
    return f".globl {name}\n.p2align 8\n.type {name},@function\n{name}:"

def resolve_waits(ops):
    vm, ds = [], []
    for o in ops:
        if o.kind == "vm": vm.append(o.tag)
        elif o.kind == "ds": ds.append(o.tag)
        elif o.kind in ("wvm", "wds"):
            q = vm if o.kind == "wvm" else ds
            tags = o.tag if isinstance(o.tag, list) else [o.tag]
            last = -1
            for i, t in enumerate(q):
                if t in tags: last = i
            assert last >= 0, ("wait for unknown tag", o.tag)
            n = len(q) - 1 - last
            mx = 63 if o.kind == "wvm" else 15
            n = min(n, mx)
            o.text = f"s_waitcnt {'vmcnt' if o.kind == 'wvm' else 'lgkmcnt'}({n})"
    return ops

def fold_loop(stages, P, label, sreg):
    T = len(stages)
    best = (0, 0)
    for s in range(T):
        n = 1
        while s + (n + 1) * P <= T and all(stages[s + n * P + i] == stages[s + i] for i in range(P)): n += 1
        if s + P <= T and n > best[1]: best = (s, n)
    s, n = best
    out = []
    if n < 2:
        for st in stages: out += st
        return out
    for st in stages[:s]: out += st
    out.append(f"s_mov_b32 {sreg}, {n}")
    out.append(f"{label}:")
    body = []
    for st in stages[s:s + P]: body += st
    out += body[:-2]
    out.append(f"s_sub_u32 {sreg}, {sreg}, 1")
    out.append(body[-2])
    out.append(f"s_cmp_lg_u32 {sreg}, 0")
    out.append(body[-1])
    assert not body[-1].startswith("s_add") and not body[-1].startswith("s_cmp") and not body[-1].startswith("s_sub") and not body[-1].startswith("s_and"), body[-1]
    out.append(f"s_cbranch_scc1 {label}")
    for st in stages[s + n * P:]: out += st
    return out

def srd(a, d, lo, hi, nbytes):
    a(f"s_mov_b32 s{d}, {lo}")
    a(f"s_and_b32 s{d+1}, {hi}, 0xffff")
    a(f"s_mov_b32 s{d+2}, {nbytes}")
    a(f"s_mov_b32 s{d+3}, 0x20000")

def stamp(a, opt, i):
    if opt.get("stamp"):
        a(f"s_memrealtime s[{64+2*i}:{65+2*i}]")
def stamp_out(a, opt, n, slot, vt):
    if not opt.get("stamp"): return
    a("s_waitcnt vmcnt(0)")
    a(f"s_memrealtime s[{64+2*n}:{65+2*n}]")
    a("s_load_dwordx2 s[88:89], s[0:1], 72")
    a("s_waitcnt lgkmcnt(0)")
    a(f"s_add_u32 s88, s88, s63"); a("s_addc_u32 s89, s89, 0")
    a("s_and_b32 s89, s89, 0xffff"); a("s_mov_b32 s90, 65536"); a("s_mov_b32 s91, 0x20000")
    a(f"v_mbcnt_lo_u32_b32 v{vt}, -1, 0"); a(f"v_mbcnt_hi_u32_b32 v{vt}, -1, v{vt}")
    a(f"s_lshl_b32 s87, s2, 2"); a(f"s_add_u32 s87, s87, s29"); a("s_lshl_b32 s87, s87, 5")
    a(f"v_cmp_eq_u32 vcc, 0, v{vt}"); a("s_and_saveexec_b64 s[92:93], vcc")
    for i in range(n + 1):
        a(f"v_mov_b32 v{vt+1}, s{64+2*i}")
        a(f"buffer_store_dword v{vt+1}, v{vt}, s[88:91], s87 offen offset:{4*i}")


def pf_addr(a, v, sreg=60):
    a(f"v_lshlrev_b32 v{v}, 7, v0")
    a(f"v_min_u32 v{v}, s{sreg+2}, v{v}")
def pf_issue(a, v, sreg=60):
    a(f"global_load_dword v{v}, v{v}, s[{sreg}:{sreg+1}]")
def stub_code_range(label, endlabel, here, sreg=60):
    return [f"s_getpc_b64 s[{sreg}:{sreg+1}]", f"{here}:", f"s_add_u32 s{sreg}, s{sreg}, {label}-{here}", f"s_addc_u32 s{sreg+1}, s{sreg+1}, ({label}-{here})>>32",
            "s_cmp_lt_u32 s2, 32", f"s_cselect_b32 s{sreg+2}, {endlabel}-{label}, 0"]

def wpf_load(a, karg):
    a(f"s_load_dwordx2 s[56:57], s[0:1], {karg}")
def wpf_issue(a, v):
    a("s_and_b32 s57, s57, 0xffff"); a("s_mov_b32 s59, 0x20000")
    a("s_mul_i32 s55, s2, 28672")
    a(f"v_lshlrev_b32 v{v}, 7, v0")
    a(f"buffer_load_dword v{v}, v{v}, s[56:59], s55 offen")
```

```python
from common import *
import struct
MB = 1 << 20
ZS = 16384 + 128
sWave = 29

def fl(x): return "0x%08x" % struct.unpack("<I", struct.pack("<f", x))[0]
def rho(h, r): return 8 * (r >> 2) + 4 * h + (r & 3)

class RA:
    def __init__(self, start=1): self.n = start
    def __call__(self, k=1, al=1):
        self.n = (self.n + al - 1) // al * al
        r = self.n; self.n += k; return r

def vr(b, n): return f"v[{b}:{b+n-1}]"
def mfma(a, d, x, y, first): a(f"v_mfma_f32_32x32x16_bf16 {vr(d,16)}, {vr(x,4)}, {vr(y,4)}, {'0' if first else vr(d,16)}")

def ws_srd(a, d, soff, nbytes):
    a(f"s_add_u32 s{d}, s6, {soff}"); a(f"s_addc_u32 s{d+1}, s7, 0"); a(f"s_and_b32 s{d+1}, s{d+1}, 0xffff")
    a(f"s_mov_b32 s{d+2}, {nbytes}"); a(f"s_mov_b32 s{d+3}, 0x20000")

def lane_wave(a, vL, vt):
    a(f"v_lshrrev_b32 v{vt}, 6, v0")
    a(f"v_and_b32 v{vL}, 63, v0")
    a(f"v_readfirstlane_b32 s{sWave}, v{vt}")

def sincos16(a, f, base, mult, co, si, tmp):
    for r in range(16):
        m = mult(r)
        t = tmp + (r & 1)
        if m == 0: src = base
        else: a(f"v_fmamk_f32 v{t}, v{f}, {fl(float(m))}, v{base}"); src = t
        a(f"v_cos_f32 v{co+r}, v{src}"); a(f"v_sin_f32 v{si+r}, v{src}")

def f32consts(a, vL, C, S, NS, t32, tmp):
    f, base = tmp + 2, tmp + 3
    a(f"v_and_b32 v{f}, 31, v{vL}"); a(f"v_cvt_f32_u32 v{f}, v{f}"); a(f"v_mul_f32 v{f}, {fl(1/32)}, v{f}")
    a(f"v_lshrrev_b32 v{base}, 5, v{vL}"); a(f"v_cvt_f32_u32 v{base}, v{base}"); a(f"v_mul_f32 v{base}, 4.0, v{base}"); a(f"v_mul_f32 v{base}, v{base}, v{f}")
    sincos16(a, f, base, lambda r: rho(0, r), t32, t32 + 16, tmp)
    for p in range(8):
        a(f"v_cvt_pk_bf16_f32 v{C+p}, v{t32+2*p}, v{t32+2*p+1}")
        a(f"v_cvt_pk_bf16_f32 v{S+p}, v{t32+16+2*p}, v{t32+16+2*p+1}")
        a(f"v_cvt_pk_bf16_f32 v{NS+p}, -v{t32+16+2*p}, -v{t32+16+2*p+1}")

def cmul_pack(a, re, im, co, si, conj, PR, PI, tmp):
    for p in range(8):
        r = 2 * p
        t = tmp + 4 * (p & 1)
        a(f"v_pk_mul_f32 {vr(t,2)}, {vr(re+r,2)}, {vr(co+r,2)}")
        a(f"v_pk_mul_f32 {vr(t+2,2)}, {vr(im+r,2)}, {vr(co+r,2)}")
        neg = " neg_lo:[0,1,0] neg_hi:[0,1,0]"
        a(f"v_pk_fma_f32 {vr(t,2)}, {vr(im+r,2)}, {vr(si+r,2)}, {vr(t,2)}" + (neg if conj else ""))
        a(f"v_pk_fma_f32 {vr(t+2,2)}, {vr(re+r,2)}, {vr(si+r,2)}, {vr(t+2,2)}" + ("" if conj else neg))
        a(f"v_cvt_pk_bf16_f32 v{PR+p}, v{t}, v{t+1}")
        a(f"v_cvt_pk_bf16_f32 v{PI+p}, v{t+2}, v{t+3}")

def cstage(a, DR, DI, PR, PI, C, S, NS, fwd, dataA):
    s1, s2 = (S, NS) if fwd else (NS, S)
    def m(d, x, c, first):
        if dataA: mfma(a, d, x, c, first)
        else: mfma(a, d, c, x, first)
    for t in range(2):
        m(DR, PR + 4 * t, C + 4 * t, t == 0)
        m(DI, PI + 4 * t, C + 4 * t, t == 0)
        m(DR, PI + 4 * t, s1 + 4 * t, False)
        m(DI, PR + 4 * t, s2 + 4 * t, False)

def reduce4(a, A, B, Cc, D, s0):
    a(f"v_permlane32_swap_b32 v{A}, v{B}"); a(f"v_permlane32_swap_b32 v{Cc}, v{D}")
    a(f"v_add_f32 v{A}, v{A}, v{B}"); a(f"v_add_f32 v{Cc}, v{Cc}, v{D}")
    a(f"v_permlane16_swap_b32 v{A}, v{Cc}")
    a(f"v_add_f32 v{A}, v{A}, v{Cc}")
    for k in (8, 4, 2, 1): a(f"v_add_f32_dpp v{A}, v{A}, v{A} row_ror:{k} row_mask:0xf bank_mask:0xf")
    for i, ln in enumerate((0, 32, 16, 48)): a(f"v_readlane_b32 s{s0+i}, v{A}, {ln}")

def ln_coef(a, ssum, ssq, vm, vrs):
    a(f"v_mul_f32 v{vm}, {fl(1/1024)}, s{ssum}" if False else f"v_mov_b32 v{vm}, s{ssum}")
    a(f"v_mov_b32 v{vrs}, s{ssq}")
    a(f"v_mul_f32 v{vm}, {fl(1/1024)}, v{vm}")
    a(f"v_mul_f32 v{vrs}, {fl(1/1024)}, v{vrs}")
    a(f"v_fma_f32 v{vrs}, -v{vm}, v{vm}, v{vrs}")
    a(f"v_max_f32 v{vrs}, 0, v{vrs}")
    a(f"v_add_f32 v{vrs}, {fl(1e-5)}, v{vrs}")
    a(f"v_rsq_f32 v{vrs}, v{vrs}")
    a(f"v_mul_f32 v{vm}, v{vm}, v{vrs}")
    a(f"v_sub_f32 v{vm}, 0, v{vm}")

def prep(a, name, opt):
    R = RA(2)
    vL, vT, vA, vO = R(), R(), R(), R()
    X = R(32, 4); Y = R(16, 4)
    a(f"L_{name}_prep:")
    a("s_load_dwordx4 s[36:39], s[0:1], 8")
    a("s_load_dwordx2 s[6:7], s[0:1], 72")
    lane_wave(a, vL, vT)
    a("s_sub_u32 s30, s2, 256"); a("s_and_b32 s31, s30, 7"); a("s_bfe_u32 s32, s30, 0x20003"); a("s_lshr_b32 s33, s30, 5")
    a(f"s_lshl_b32 s34, s31, 2"); a(f"s_add_u32 s34, s34, s{sWave}"); a("s_lshl_b32 s34, s34, 4")
    a(f"v_and_b32 v{vT}, 15, v{vL}"); a(f"v_add_u32 v{vT}, s34, v{vT}")
    a(f"v_and_b32 v{vO}, 255, v{vT}"); a(f"v_lshlrev_b32 v{vO}, 14, v{vO}")
    a(f"v_lshrrev_b32 v{vA}, 8, v{vT}"); a(f"v_lshl_add_u32 v{vO}, v{vA}, 13, v{vO}")
    a(f"v_cmp_eq_u32 vcc, 0, v{vT}"); a(f"v_mov_b32 v{vA}, 512"); a(f"v_cndmask_b32 v{vT}, v{vT}, v{vA}, vcc")
    a(f"v_lshrrev_b32 v{vA}, 4, v{vL}")
    a(f"v_lshl_add_u32 v{vO}, v{vA}, 4, v{vO}")
    a(f"v_mul_u32_u24 v{vA}, 2052, v{vA}"); a(f"v_lshl_add_u32 v{vA}, v{vT}, 1, v{vA}")
    a("s_lshl_b32 s34, s33, 4"); a("s_add_u32 s34, s34, s32"); a(f"s_mul_i32 s34, s34, {16*1026}")
    a("s_lshl_b32 s35, s33, 2"); a("s_add_u32 s35, s35, s32"); a("s_lshl_b32 s35, s35, 7")
    a("s_waitcnt lgkmcnt(0)")
    srd(a, 8, "s36", "s37", 2048 * 1026); srd(a, 12, "s38", "s39", 2048 * 1026)
    ws_srd(a, 16, "s5", 4 * MB)
    for g in range(4):
        for j in range(4):
            off = ((g & 1) + 8 * (g >> 1) + 64 * j) * 1026
            a(f"s_add_u32 s30, s34, {off}")
            a(f"buffer_load_ushort v{X+8*g+j}, v{vA}, s[8:11], s30 offen")
            a(f"buffer_load_ushort v{X+8*g+4+j}, v{vA}, s[12:15], s30 offen")
    for g in range(4):
        a(f"s_waitcnt vmcnt({8*(3-g)+g})")
        for j in range(4): a(f"v_lshl_or_b32 v{Y+4*g+j}, v{X+8*g+4+j}, 16, v{X+8*g+j}")
        a(f"s_add_u32 s30, s35, {(g&1)*4096 + (g>>1)*64}")
        a(f"buffer_store_dwordx4 {vr(Y+4*g,4)}, v{vO}, s[16:19], s30 offen {opt.get('sf','sc1')}")
    a("s_endpgm")

def k1(name, opt):
    L = []; a = L.append
    R = RA(1)
    vPF, vL, vT, vT2, vA = R(), R(), R(), R(), R()
    tmp = R(8, 2); X = R(16, 4); F = R(32, 2)
    C, S, NS = R(8, 4), R(8, 4), R(8, 4)
    TC, TS = R(16, 2), R(16, 2)
    vW, vTr, vW2, vSt = R(), R(), R(), R(); RP = R(4); RM = R(4)
    PR, PI = R(8, 4), R(8, 4); DR, DI = R(16, 4), R(16, 4)
    OB, WST, NST = 16384, 4896, 9984
    a(f"L_{name}:")
    stamp(a, opt, 0)
    a("s_cmp_ge_u32 s2, s34"); a(f"s_cbranch_scc1 L_{name}_end")
    a("s_cmp_ge_u32 s2, 256"); a(f"s_cbranch_scc1 L_{name}_prep")
    a("s_load_dwordx2 s[36:37], s[0:1], 0")
    a("s_load_dwordx2 s[38:39], s[0:1], 56")
    a("s_load_dwordx2 s[6:7], s[0:1], 72")
    lane_wave(a, vL, vT)
    a(f"v_lshlrev_b32 v{vA}, 4, v{vL}")
    a("s_and_b32 s30, s2, 31"); a("s_lshr_b32 s31, s2, 5"); a("s_lshl_b32 s31, s31, 6"); a("s_add_u32 s30, s30, s31")
    a(f"s_lshr_b32 s31, s{sWave}, 1"); a("s_lshl_b32 s31, s31, 5"); a("s_add_u32 s30, s30, s31")
    a(f"s_and_b32 s31, s{sWave}, 1"); a("s_lshl_b32 s31, s31, 9"); a("s_add_u32 s30, s30, s31")
    a("s_lshl_b32 s30, s30, 11"); a(f"s_add_u32 s31, s30, {2*MB}")
    NP = opt.get("NP", 0)
    if NP:
        PP = PR; R(max(0, 16 * (NP + 1) - 48))
        a(f"v_and_b32 v{vT}, 1, v{vL}"); a(f"v_lshlrev_b32 v{vT2}, 10, v{vT}")
        a(f"v_bfe_u32 v{vT}, v{vL}, 1, 1"); a(f"v_lshl_add_u32 v{vT2}, v{vT}, 9, v{vT2}")
        a(f"v_lshrrev_b32 v{vT}, 2, v{vL}"); a(f"v_lshl_add_u32 v{vT2}, v{vT}, 4, v{vT2}")
    a("s_waitcnt lgkmcnt(0)")
    if NP:
        a("s_cmp_lg_u32 s3, 1"); a(f"s_cbranch_scc1 L_{name}_red")
        srd(a, 8, "s36", "s37", 4 * MB)
    else:
        a("s_add_u32 s40, s6, s35"); a("s_addc_u32 s41, s7, 0")
        a("s_cmp_eq_u32 s3, 1"); a("s_cselect_b32 s8, s36, s40"); a("s_cselect_b32 s9, s37, s41")
        a("s_and_b32 s9, s9, 0xffff"); a(f"s_mov_b32 s10, {4*MB}"); a("s_mov_b32 s11, 0x20000")
    a(f"buffer_load_dwordx4 {vr(X,4)}, v{vA}, s[8:11], s30 offen")
    a(f"buffer_load_dwordx4 {vr(X+4,4)}, v{vA}, s[8:11], s30 offen offset:1024")
    a(f"buffer_load_dwordx4 {vr(X+8,4)}, v{vA}, s[8:11], s31 offen")
    a(f"buffer_load_dwordx4 {vr(X+12,4)}, v{vA}, s[8:11], s31 offen offset:1024")
    if NP:
        a(f"s_branch L_{name}_loaded")
        a(f"L_{name}_red:")
        ws_srd(a, 8, "s50", NP * 4 * MB); ws_srd(a, 16, "s51", 4 * MB)
        for rw in range(2):
            for i in range(2): a(f"buffer_load_dwordx4 {vr(PP+8*rw+4*i,4)}, v{vT2}, s[16:19], s{30+rw} offen offset:{256*i}")
        for p in range(NP):
            for rw in range(2):
                if p: a(f"s_add_u32 s{52+rw}, s{30+rw}, {p*4*MB}")
                for i in range(2): a(f"buffer_load_dwordx4 {vr(PP+16*(p+1)+8*rw+4*i,4)}, v{vA}, s[8:11], s{(52 if p else 30)+rw} offen offset:{1024*i}")
        a("s_add_u32 s40, s6, s35"); a("s_addc_u32 s41, s7, 0")
        a("s_cmp_eq_u32 s3, 2"); a("s_cselect_b32 s20, s38, s40"); a("s_cselect_b32 s21, s39, s41")
        a("s_and_b32 s21, s21, 0xffff"); a(f"s_mov_b32 s22, {4*MB}"); a("s_mov_b32 s23, 0x20000")
        a("s_mov_b32 s52, s30"); a("s_mov_b32 s53, s31")
        a("s_cmp_eq_u32 s3, 2"); a(f"s_cbranch_scc1 L_{name}_sum")
        a(f"L_{name}_loaded:")
    ws_srd(a, 12, "s4", 256 * ZS)
    f32consts(a, vL, C, S, NS, F, tmp)
    a(f"v_mul_f32 v{tmp+2}, {fl(1/32)}, v{tmp+2}"); a(f"v_mul_f32 v{tmp+3}, {fl(1/32)}, v{tmp+3}")
    sincos16(a, tmp + 2, tmp + 3, lambda r: rho(0, r), TC, TS, tmp)
    a(f"s_lshr_b32 s30, s{sWave}, 1"); a(f"s_and_b32 s31, s{sWave}, 1")
    a("s_lshl_b32 s32, s30, 13"); a("s_lshl_b32 s33, s31, 11"); a("s_add_u32 s32, s32, s33")
    a(f"v_add_u32 v{vW}, s32, v{vA}")
    a(f"v_lshrrev_b32 v{vT}, 5, v{vL}"); a(f"v_bfe_u32 v{vT2}, v{vL}, 2, 2"); a(f"v_lshl_add_u32 v{vT2}, v{vT}, 2, v{vT2}")
    a(f"v_lshlrev_b32 v{vTr}, 6, v{vT2}")
    a(f"v_bfe_u32 v{vT2}, v{vL}, 4, 1"); a(f"v_lshl_add_u32 v{vTr}, v{vT2}, 5, v{vTr}")
    a(f"v_and_b32 v{vT2}, 3, v{vL}"); a(f"v_lshl_add_u32 v{vTr}, v{vT2}, 3, v{vTr}")
    a(f"s_lshl_b32 s32, s{sWave}, 12"); a(f"v_add_u32 v{vTr}, s32, v{vTr}")
    a(f"s_mul_i32 s32, s30, {NST}"); a(f"s_mul_i32 s33, s31, {WST}"); a("s_add_u32 s32, s32, s33"); a(f"s_add_u32 s32, s32, {OB}")
    a(f"v_and_b32 v{vT2}, 31, v{vL}"); a(f"v_mul_u32_u24 v{vW2}, 144, v{vT2}")
    a(f"v_lshrrev_b32 v{vT2}, 3, v{vT2}"); a(f"v_lshl_add_u32 v{vW2}, v{vT2}, 6, v{vW2}")
    a(f"v_lshl_add_u32 v{vW2}, v{vT}, 4, v{vW2}"); a(f"v_add_u32 v{vW2}, s32, v{vW2}")
    a(f"s_lshl_b32 s32, s{sWave}, 4")
    a(f"v_lshrrev_b32 v{vT}, 2, v{vL}"); a(f"v_add_u32 v{vT}, s32, v{vT}")
    a(f"v_mul_u32_u24 v{vSt}, {ZS}, v{vT}"); a(f"v_and_b32 v{vT2}, 3, v{vL}"); a(f"v_lshl_add_u32 v{vSt}, v{vT2}, 4, v{vSt}")
    a(f"v_bfe_u32 v{vT2}, v{vL}, 1, 1"); a(f"v_lshl_add_u32 v{vT}, v{vT2}, 8, v{vT}")
    a(f"v_and_b32 v{vT2}, 1, v{vL}"); a(f"v_mul_u32_u24 v{vT2}, {WST}, v{vT2}"); a(f"v_add_u32 v{vT2}, {OB}, v{vT2}")
    def pos(dst, l):
        a(f"v_lshrrev_b32 v{tmp}, 5, v{l}"); a(f"v_lshl_add_u32 v{tmp}, v{tmp}, 2, v{l}")
        a(f"v_lshrrev_b32 v{tmp+1}, 8, v{l}"); a(f"v_lshl_add_u32 v{tmp}, v{tmp+1}, 4, v{tmp}")
        a(f"v_lshl_add_u32 v{dst}, v{tmp}, 2, v{vT2}")
    a(f"v_mov_b32 v{tmp+4}, 512"); a(f"v_cmp_eq_u32 vcc, 0, v{vT}")
    a(f"v_sub_u32 v{tmp+5}, 1024, v{vT}")
    a(f"v_cndmask_b32 v{tmp+6}, v{vT}, v{tmp+4}, vcc"); pos(RP, tmp + 6)
    a(f"v_cndmask_b32 v{tmp+6}, v{tmp+5}, v{tmp+4}, vcc"); pos(RM, tmp + 6)
    a(f"v_add_u32 v{tmp+6}, 64, v{vT}"); pos(RP + 1, tmp + 6)
    a(f"v_subrev_u32 v{tmp+6}, 64, v{tmp+5}"); pos(RM + 1, tmp + 6)
    for i in (2, 3):
        a(f"v_add_u32 v{RP+i}, {(i-1)*288}, v{RP+1}"); a(f"v_subrev_u32 v{RM+i}, {(i-1)*288}, v{RM+1}")
    a("s_lshl_b32 s42, s2, 6")
    for i in range(1, 4): a(f"s_add_u32 s{42+i}, s42, {i*64*ZS}")
    stamp(a, opt, 1)
    if NP:
        a("s_cmp_eq_u32 s3, 1"); a(f"s_cbranch_scc1 L_{name}_ln0")
        a(f"L_{name}_sum:")
        a(f"v_mov_b32 v{tmp+4}, 0x3f80"); a(f"v_mov_b32 v{tmp+5}, 0x3f800000")
        a(f"s_waitcnt vmcnt({4*NP})")
        for p in range(16):
            a(f"v_lshlrev_b32 v{F+2*p}, 16, v{PP+p}"); a(f"v_and_b32 v{F+2*p+1}, 0xffff0000, v{PP+p}")
        for k in range(NP):
            for p in range(16):
                if p % 4 == 0: a(f"s_waitcnt vmcnt({4*(NP-k)-1-p//4})")
                for e in range(2): a(f"v_dot2_f32_bf16 v{F+2*p+e}, v{PP+16*(k+1)+p}, v{tmp+4+e}, v{F+2*p+e}")
        a("s_nop 1")
        for p in range(16):
            a(f"v_cvt_pk_bf16_f32 v{X+p}, v{F+2*p}, v{F+2*p+1}")
            if p % 4 == 3: a(f"buffer_store_dwordx4 {vr(X+p-3,4)}, v{vA}, s[20:23], s{52+(p>>3)} offen offset:{1024*((p>>2)&1)} {opt.get('sf','sc1')}")
        a("s_cmp_eq_u32 s3, 2"); a(f"s_cbranch_scc1 L_{name}_fin")
        a(f"s_branch L_{name}_ln")
        a(f"L_{name}_ln0:")
        a("s_waitcnt vmcnt(0)")
        a(f"L_{name}_ln:")
    a(f"v_mov_b32 v{tmp+4}, 0x3f803f80")
    for rw in range(2):
        if not NP: a(f"s_waitcnt vmcnt({2*(1-rw)})")
        x = X + 8 * rw
        a(f"v_dot2_f32_bf16 v{tmp+2*rw}, v{x}, v{tmp+4}, 0"); a(f"v_dot2_f32_bf16 v{tmp+2*rw+1}, v{x}, v{x}, 0")
        for p in range(1, 8):
            a(f"v_dot2_f32_bf16 v{tmp+2*rw}, v{x+p}, v{tmp+4}, v{tmp+2*rw}"); a(f"v_dot2_f32_bf16 v{tmp+2*rw+1}, v{x+p}, v{x+p}, v{tmp+2*rw+1}")
    pf_addr(a, vPF); pf_issue(a, vPF)
    reduce4(a, tmp, tmp + 1, tmp + 2, tmp + 3, 46)
    for p in range(16):
        a(f"v_lshlrev_b32 v{F+2*p}, 16, v{X+p}"); a(f"v_and_b32 v{F+2*p+1}, 0xffff0000, v{X+p}")
    ln_coef(a, 46, 47, tmp, tmp + 2); ln_coef(a, 48, 49, tmp + 4, tmp + 6)
    bc = " op_sel_hi:[1,0,0]"
    for p in range(8):
        fa, fb = F + 2 * p, F + 16 + 2 * p
        a(f"v_pk_fma_f32 {vr(fa,2)}, {vr(fa,2)}, {vr(tmp+2,2)}, {vr(tmp,2)}{bc}")
        a(f"v_pk_fma_f32 {vr(fb,2)}, {vr(fb,2)}, {vr(tmp+6,2)}, {vr(tmp+4,2)}{bc}")
        a(f"v_pk_add_f32 {vr(DR,2)}, {vr(fa,2)}, {vr(fb,2)}")
        a(f"v_pk_add_f32 {vr(DR+2,2)}, {vr(fa,2)}, {vr(fb,2)} neg_lo:[0,1] neg_hi:[0,1]")
        a(f"v_cvt_pk_bf16_f32 v{X+p}, v{DR}, v{DR+1}"); a(f"v_cvt_pk_bf16_f32 v{X+8+p}, v{DR+2}, v{DR+3}")
        if p == 3: a(f"ds_write_b128 v{vW}, {vr(X,4)}"); a(f"ds_write_b128 v{vW}, {vr(X+8,4)} offset:4096")
    a(f"ds_write_b128 v{vW}, {vr(X+4,4)} offset:1024"); a(f"ds_write_b128 v{vW}, {vr(X+12,4)} offset:5120")
    a("s_waitcnt lgkmcnt(0)"); a("s_barrier")
    for t in range(2):
        for part, P in ((0, PR), (1, PI)):
            for jj in range(2): a(f"ds_read_b64_tr_b16 {vr(P+4*t+2*jj,2)}, v{vTr} offset:{part*2048 + (16*t+8*jj)*64}")
    a("s_waitcnt lgkmcnt(0)")
    stamp(a, opt, 2)
    cstage(a, DR, DI, PR, PI, C, S, NS, True, True)
    cmul_pack(a, DR, DI, TC, TS, False, PR, PI, tmp)
    cstage(a, DR, DI, PR, PI, C, S, NS, True, True)
    for r in range(16):
        a(f"v_cvt_pk_bf16_f32 v{X+r}, v{DR+r}, v{DI+r}")
        if r % 4 == 3: a(f"ds_write_b128 v{vW2}, {vr(X+r-3,4)} offset:{32*(r>>2)}")
    a("s_waitcnt lgkmcnt(0)"); a("s_barrier")
    for i in range(4):
        a(f"ds_read2st64_b32 {vr(X+4*i,2)}, v{RP+i} offset0:0 offset1:{NST//256}")
        a(f"ds_read2st64_b32 {vr(X+4*i+2,2)}, v{RM+i} offset0:0 offset1:{NST//256}")
    for i in range(4):
        a(f"s_waitcnt lgkmcnt({2*(3-i)})")
        a(f"buffer_store_dwordx4 {vr(X+4*i,4)}, v{vSt}, s[12:15], s{42+i} offen {opt.get('sf','sc1')}")
    a(f"L_{name}_fin:")
    stamp(a, opt, 3)
    stamp_out(a, opt, 4, opt.get("slot", 0), tmp)
    a(f"L_{name}_end:")
    a("s_endpgm")
    prep(a, name, opt)
    return L, OB + 2 * NST, R.n

def k2(name, opt):
    L = []; a = L.append
    R = RA(1)
    vL, vT, vT2, vA, vK = R(), R(), R(), R(), R()
    tmp = R(8, 2); vW, vSt = R(), R(); X = R(16, 4); W = R(16, 4)
    BR, BI = R(16, 4), R(16, 4); AR, AI = R(16, 4), R(16, 4)
    C, S, NS = R(8, 4), R(8, 4), R(8, 4)
    TC, TS = R(16, 2), R(16, 2); UC, US = R(16, 2), R(16, 2)
    PR, PI = R(8, 4), R(8, 4); DR, DI = R(16, 4), R(16, 4)
    vG = R(4); vR0, vR1, vPF, vPW = R(), R(), R(), R()
    RS = 272; CB = 32 * RS; XB = 4 * CB
    a(f"L_{name}:")
    stamp(a, opt, 0)
    a("s_cmp_ge_u32 s2, 256"); a(f"s_cbranch_scc1 L_{name}_end")
    a("s_load_dwordx2 s[6:7], s[0:1], 72")
    wpf_load(a, 32)
    lane_wave(a, vL, vT)
    a(f"v_lshlrev_b32 v{vA}, 6, v{vL}"); a(f"v_lshlrev_b32 v{vT2}, 4, v{vL}")
    a(f"s_mul_i32 s30, s2, {ZS}"); a(f"s_lshl_b32 s31, s{sWave}, 4"); a("s_add_u32 s30, s30, s31")
    a(f"s_lshl_b32 s31, s2, 2"); a(f"s_add_u32 s31, s31, s{sWave}"); a("s_lshl_b32 s31, s31, 12")
    a("s_waitcnt lgkmcnt(0)")
    ws_srd(a, 8, "s3", 256 * ZS)
    for i in range(4):
        a(f"buffer_load_dwordx4 {vr(X+4*i,4)}, v{vA}, s[8:11], s30 offen")
        if i < 3: a("s_add_u32 s30, s30, 4096")
    ws_srd(a, 16, "s5", 4 * MB)
    for i in range(4): a(f"buffer_load_dwordx4 {vr(W+4*i,4)}, v{vT2}, s[16:19], s31 offen offset:{1024*i}")
    pf_addr(a, vPF); pf_issue(a, vPF); wpf_issue(a, vPW)
    ws_srd(a, 12, "s4", 256 * ZS)
    a(f"s_and_b32 s32, s{sWave}, 1")
    a(f"v_and_b32 v{vT}, 31, v{vL}"); a(f"v_lshl_add_u32 v{vK}, v{vT}, 1, s32"); a(f"v_cvt_f32_u32 v{vK}, v{vK}")
    a(f"v_fma_f32 v{tmp}, v{vK}, 0.5, 0.5"); a(f"v_mul_f32 v{tmp}, 0.5, v{tmp}")
    a(f"v_cos_f32 v{tmp+1}, v{tmp}"); a(f"v_sin_f32 v{vG+2}, v{tmp}")
    a(f"v_mul_f32 v{tmp+2}, {fl(1/64)}, v{vK}")
    a(f"v_add_f32 v{vG}, 1.0, v{tmp+1}"); a(f"v_sub_f32 v{vG+1}, 1.0, v{tmp+1}")
    a(f"v_lshrrev_b32 v{vT}, 5, v{vL}"); a(f"v_cvt_f32_u32 v{vG+3}, v{vT}")
    a(f"v_mul_f32 v{tmp+3}, v{vG+3}, v{tmp+2}"); a(f"v_add_f32 v{tmp+3}, v{tmp+3}, v{tmp+3}")
    for i in range(4):
        for nu in range(2):
            m = 4 * i + nu
            if m: a(f"v_fmamk_f32 v{tmp}, v{tmp+2}, {fl(float(m))}, v{tmp+3}")
            src = tmp if m else tmp + 3
            a(f"v_cos_f32 v{tmp+4}, v{src}"); a(f"v_sin_f32 v{tmp+5}, v{src}")
            a(f"v_mul_f32 v{tmp+6}, v{tmp+4}, v{vG+2}"); a(f"v_mul_f32 v{tmp+7}, v{tmp+5}, v{vG+2}")
            a(f"v_fma_f32 v{DR}, v{tmp+4}, v{vG}, -v{tmp+7}")
            a(f"v_fma_f32 v{DR+1}, v{tmp+5}, v{vG}, v{tmp+6}")
            a(f"v_fma_f32 v{DR+2}, v{tmp+4}, v{vG+1}, v{tmp+7}")
            a(f"v_fma_f32 v{DR+3}, -v{tmp+5}, v{vG+1}, v{tmp+6}")
            a(f"v_cvt_pk_bf16_f32 v{BR+4*i+nu}, v{DR}, v{DR+1}"); a(f"v_cvt_pk_bf16_f32 v{BR+4*i+2+nu}, v{DR+2}, v{DR+3}")
            a(f"v_cvt_pk_bf16_f32 v{BI+4*i+nu}, -v{DR+1}, v{DR}"); a(f"v_cvt_pk_bf16_f32 v{BI+4*i+2+nu}, v{DR+3}, -v{DR+2}")
    a(f"s_mul_i32 s33, s{sWave}, {CB}")
    a(f"v_and_b32 v{vT2}, 31, v{vL}"); a(f"v_mul_u32_u24 v{vT2}, {RS}, v{vT2}"); a(f"v_lshl_add_u32 v{vT2}, v{vT}, 4, v{vT2}"); a(f"v_add_u32 v{vT2}, s33, v{vT2}")
    for i in range(4):
        a(f"ds_write_b128 v{vT2}, {vr(BR+4*i,4)} offset:{32*i}"); a(f"ds_write_b128 v{vT2}, {vr(BI+4*i,4)} offset:{128+32*i}")
    a(f"v_bfe_u32 v{vT2}, v{vL}, 2, 2"); a(f"v_lshl_add_u32 v{vT2}, v{vT}, 2, v{vT2}"); a(f"v_mul_u32_u24 v{vT2}, {RS}, v{vT2}")
    a(f"v_bfe_u32 v{tmp}, v{vL}, 4, 1"); a(f"v_lshl_add_u32 v{vT2}, v{tmp}, 5, v{vT2}")
    a(f"v_and_b32 v{tmp}, 1, v{vL}"); a(f"v_lshl_add_u32 v{vT2}, v{tmp}, 4, v{vT2}")
    a(f"v_bfe_u32 v{tmp}, v{vL}, 1, 1"); a(f"v_lshl_add_u32 v{vT2}, v{tmp}, 3, v{vT2}"); a(f"v_add_u32 v{vT2}, s33, v{vT2}")
    a(f"v_mul_f32 v{tmp+2}, {fl(1/2048)}, v{vK}"); a(f"v_mul_f32 v{tmp+3}, 4.0, v{vG+3}"); a(f"v_mul_f32 v{tmp+3}, v{tmp+3}, v{tmp+2}")
    sincos16(a, tmp + 2, tmp + 3, lambda r: rho(0, r), TC, TS, tmp)
    a("s_waitcnt lgkmcnt(0)")
    for part, A_ in ((0, AR), (1, AI)):
        for tile in range(2):
            for t2 in range(2):
                for jj in range(2):
                    a(f"ds_read_b64_tr_b16 {vr(A_+8*tile+4*t2+2*jj,2)}, v{vT2} offset:{(16*t2+8*jj)*RS + part*128 + tile*64}")
    f32consts(a, vL, C, S, NS, DR, tmp)
    a(f"v_mul_f32 v{tmp+2}, {fl(1/64)}, v{tmp+2}")
    a(f"v_lshl_add_u32 v{tmp+3}, v{vT}, 3, s32"); a(f"v_cvt_f32_u32 v{tmp+3}, v{tmp+3}"); a(f"v_mul_f32 v{tmp+3}, v{tmp+3}, v{tmp+2}")
    sincos16(a, tmp + 2, tmp + 3, lambda r: 2 * rho(0, r), UC, US, tmp)
    a(f"s_lshl_b32 s33, s{sWave}, 12"); a(f"s_add_u32 s33, s33, {XB}")
    a(f"v_lshl_add_u32 v{vW}, v{vL}, 4, s33")
    a(f"s_lshl_b32 s33, s{sWave}, 8"); a(f"s_add_u32 s33, s33, {XB}")
    a(f"v_lshl_add_u32 v{vR0}, v{vL}, 2, s33")
    a("s_cmp_eq_u32 s2, 0"); a("s_cselect_b32 s33, 8192, 0")
    a(f"v_bfe_u32 v{tmp}, v{vL}, 1, 1"); a(f"v_mul_u32_u24 v{tmp}, s33, v{tmp}")
    a(f"v_sub_u32 v{vR1}, v{vR0}, v{tmp}"); a(f"v_add_u32 v{vR1}, 8192, v{vR1}"); a(f"v_add_u32 v{vR0}, v{vR0}, v{tmp}")
    a(f"s_lshl_b32 s33, s{sWave}, 4")
    a(f"v_lshrrev_b32 v{tmp}, 2, v{vL}"); a(f"v_add_u32 v{tmp}, s33, v{tmp}")
    a(f"v_mul_u32_u24 v{vSt}, {ZS}, v{tmp}"); a(f"v_and_b32 v{tmp}, 3, v{vL}"); a(f"v_lshl_add_u32 v{vSt}, v{tmp}, 4, v{vSt}")
    a("s_lshl_b32 s42, s2, 6")
    for i in range(1, 4): a(f"s_add_u32 s{42+i}, s42, {i*64*ZS}")
    stamp(a, opt, 1)
    for i in range(4):
        a(f"s_waitcnt vmcnt({9-i})")
        mfma(a, DR, X + 4 * i, BR + 4 * i, i == 0); mfma(a, DI, X + 4 * i, BI + 4 * i, i == 0)
    stamp(a, opt, 2)
    cmul_pack(a, DR, DI, TC, TS, False, PR, PI, tmp)
    cstage(a, DR, DI, PR, PI, C, S, NS, True, False)
    a("s_waitcnt vmcnt(2)")
    for r in range(16):
        a(f"v_lshlrev_b32 v{TC+r}, 16, v{W+r}"); a(f"v_and_b32 v{TS+r}, 0xffff0000, v{W+r}")
    cmul_pack(a, DR, DI, TC, TS, True, PR, PI, tmp)
    cstage(a, DR, DI, PR, PI, C, S, NS, False, True)
    cmul_pack(a, DR, DI, UC, US, True, PR, PI, tmp)
    a("s_waitcnt lgkmcnt(0)")
    for t2 in range(2):
        for tile, D in ((0, DR), (1, DI)): mfma(a, D, AR + 8 * tile + 4 * t2, PR + 4 * t2, t2 == 0)
        for tile, D in ((0, DR), (1, DI)): mfma(a, D, AI + 8 * tile + 4 * t2, PI + 4 * t2, False)
    a(f"s_lshr_b32 s33, s{sWave}, 1"); a("s_or_b32 s33, s33, s2"); a("s_cmp_lg_u32 s33, 0")
    a("s_nop 9")
    a(f"s_cbranch_scc1 L_{name}_nofix")
    for D in (DR, DI):
        for r in (0, 1, 2, 3, 8, 9, 10, 11):
            a(f"v_add_f32 v{D+r+4}, v{D+r}, v{D+r+4}"); a(f"v_mul_f32 v{D+r+4}, 0.5, v{D+r+4}"); a(f"v_mov_b32 v{D+r}, 0")
    a(f"L_{name}_nofix:")
    for i in range(4):
        D = (DR, DI)[i >> 1] + 8 * (i & 1)
        for p in range(4): a(f"v_cvt_pk_bf16_f32 v{X+4*i+p}, v{D+2*p}, v{D+2*p+1}")
        a(f"ds_write_b128 v{vW}, {vr(X+4*i,4)} offset:{1024*i}")
    a("s_waitcnt lgkmcnt(0)"); a("s_barrier")
    for i in range(4):
        a(f"ds_read2st64_b32 {vr(X+4*i,2)}, v{vR0} offset0:{4*i} offset1:{4*i+16}")
        a(f"ds_read2st64_b32 {vr(X+4*i+2,2)}, v{vR1} offset0:{4*i} offset1:{4*i+16}")
    for i in range(4):
        a(f"s_waitcnt lgkmcnt({2*(3-i)})")
        a(f"buffer_store_dwordx4 {vr(X+4*i,4)}, v{vSt}, s[12:15], s{42+i} offen {opt.get('sf','sc1')}")
    stamp(a, opt, 3)
    stamp_out(a, opt, 4, opt.get("slot", 0), tmp)
    a(f"L_{name}_end:")
    a("s_endpgm")
    return L, XB + 16384, R.n

def k3(name, opt):
    L = []; a = L.append
    R = RA(1)
    vL, vT, vT2, vA, vA7, vX = R(), R(), R(), R(), R(), R()
    tmp = R(8, 2); V = R(32, 4); X = R(16, 4)
    BR, BI = R(32, 4), R(32, 4)
    C, S, NS = R(8, 4), R(8, 4), R(8, 4)
    TC, TS = R(16, 2), R(16, 2)
    PR, PI = R(8, 4), R(8, 4); DR, DI = R(16, 4), R(16, 4)
    vW, vRd, vSt, vPF, vPW = R(), R(), R(), R(), R()
    AS = 32 * 528
    a(f"L_{name}:")
    stamp(a, opt, 0)
    a("s_cmp_ge_u32 s2, 256"); a(f"s_cbranch_scc1 L_{name}_end")
    a("s_load_dwordx2 s[36:37], s[0:1], 0")
    a("s_load_dwordx2 s[6:7], s[0:1], 72")
    wpf_load(a, 40)
    lane_wave(a, vL, vT)
    a(f"v_and_b32 v{vT2}, 31, v{vL}"); a(f"v_lshrrev_b32 v{vT}, 5, v{vL}")
    a(f"v_sub_u32 v{vA}, 32, v{vT2}"); a(f"v_cmp_eq_u32 vcc, 0, v{vT}")
    a(f"v_lshlrev_b32 v{vX}, 6, v{vT2}"); a(f"v_lshl_add_u32 v{vX}, v{vT}, 5, v{vX}")
    a(f"v_cndmask_b32 v{vA}, v{vA}, v{vT2}, vcc")
    a(f"v_add_u32 v{vA7}, 224, v{vA}"); a(f"v_and_b32 v{vA7}, 255, v{vA7}")
    a(f"v_lshlrev_b32 v{vA}, 6, v{vA}"); a(f"v_lshl_add_u32 v{vA}, v{vT}, 5, v{vA}")
    a(f"v_lshlrev_b32 v{vA7}, 6, v{vA7}"); a(f"v_lshl_add_u32 v{vA7}, v{vT}, 5, v{vA7}")
    a(f"s_lshr_b32 s32, s{sWave}, 1"); a(f"s_and_b32 s33, s{sWave}, 1")
    a(f"s_mul_i32 s30, s2, {ZS}"); a("s_lshl_b32 s31, s32, 4"); a("s_add_u32 s30, s30, s31")
    a("s_and_b32 s38, s2, 31"); a("s_lshr_b32 s31, s2, 5"); a("s_lshl_b32 s31, s31, 6"); a("s_add_u32 s38, s38, s31")
    a("s_lshl_b32 s31, s32, 5"); a("s_add_u32 s38, s38, s31"); a("s_lshl_b32 s31, s33, 10"); a("s_add_u32 s38, s38, s31")
    a("s_lshl_b32 s38, s38, 11"); a(f"s_add_u32 s39, s38, {MB}")
    a("s_waitcnt lgkmcnt(0)")
    ws_srd(a, 8, "s4", 256 * ZS)
    for i in range(7):
        if i and i % 2 == 0: a(f"s_add_u32 s31, s30, {2048*i}")
        a(f"buffer_load_dwordx4 {vr(V+4*i,4)}, v{vA}, s[8:11], s{30 if i < 2 else 31} offen offset:{2048*(i&1)}")
    a(f"buffer_load_dwordx4 {vr(V+28,4)}, v{vA7}, s[8:11], s30 offen")
    a("s_add_u32 s40, s6, s35"); a("s_addc_u32 s41, s7, 0")
    a("s_cmp_eq_u32 s3, 1"); a("s_cselect_b32 s16, s36, s40"); a("s_cselect_b32 s17, s37, s41")
    a("s_and_b32 s17, s17, 0xffff"); a(f"s_mov_b32 s18, {4*MB}"); a("s_mov_b32 s19, 0x20000")
    for q in range(2):
        for e in range(2): a(f"buffer_load_dwordx4 {vr(X+8*q+4*e,4)}, v{vX}, s[16:19], s{38+q} offen offset:{16*e}")
    pf_addr(a, vPF); pf_issue(a, vPF); wpf_issue(a, vPW)
    ws_srd(a, 12, "s5", 4 * MB); ws_srd(a, 20, "s34", 4 * MB)
    a(f"v_bfe_u32 v{tmp}, v{vL}, 2, 1"); a(f"v_lshlrev_b32 v{tmp}, 4, v{tmp}")
    a(f"v_bfe_u32 v{tmp+1}, v{vL}, 3, 2"); a(f"v_lshl_add_u32 v{tmp}, v{tmp+1}, 2, v{tmp}")
    a(f"v_and_b32 v{tmp+1}, 3, v{vL}"); a(f"v_add_u32 v{tmp}, v{tmp}, v{tmp+1}")
    a(f"v_cvt_f32_u32 v{tmp+4}, v{tmp}"); a(f"v_mul_f32 v{tmp+4}, {fl(1/32)}, v{tmp+4}")
    a(f"v_cvt_f32_u32 v{tmp+5}, v{vT}")
    a(f"v_fma_f32 v{tmp+2}, v{tmp+5}, -2.0, 1.0"); a(f"v_mul_f32 v{tmp+2}, v{tmp+2}, v{tmp+4}")
    a(f"v_mul_f32 v{tmp+3}, v{tmp+5}, v{tmp+4}"); a(f"v_mul_f32 v{tmp+3}, {fl(31.0)}, v{tmp+3}")
    sincos16(a, tmp + 2, tmp + 3, lambda r: r, DR, DI, tmp)
    a("s_cmp_eq_u32 s33, 1"); a("s_cselect_b32 s31, 0x80008000, 0")
    for i in range(8):
        for js in range(2):
            x = i + 8 * js
            a(f"v_cvt_pk_bf16_f32 v{BR+4*i+2*js}, v{DR+x}, -v{DI+x}"); a(f"v_cvt_pk_bf16_f32 v{BI+4*i+2*js}, v{DI+x}, v{DR+x}")
            a(f"v_xor_b32 v{BR+4*i+2*js+1}, s31, v{BR+4*i+2*js}"); a(f"v_xor_b32 v{BI+4*i+2*js+1}, s31, v{BI+4*i+2*js}")
    a(f"v_mul_f32 v{tmp+2}, {fl(1/32)}, v{tmp+4}"); a(f"v_mul_f32 v{tmp+3}, 4.0, v{tmp+5}"); a(f"v_mul_f32 v{tmp+3}, v{tmp+3}, v{tmp+2}")
    sincos16(a, tmp + 2, tmp + 3, lambda r: rho(0, r), TC, TS, tmp)
    f32consts(a, vL, C, S, NS, DR, tmp)
    a("s_lshl_b32 s31, s32, 2"); a("s_add_u32 s31, s31, s33"); a("s_lshl_b32 s31, s31, 4")
    a(f"v_mul_u32_u24 v{vW}, 528, v{vT2}"); a(f"v_lshl_add_u32 v{vW}, v{vT}, 8, v{vW}"); a(f"v_add_u32 v{vW}, s31, v{vW}")
    a(f"s_mul_i32 s31, s{sWave}, 1056")
    a(f"v_mul_u32_u24 v{vRd}, 528, v{vT}"); a(f"v_lshl_add_u32 v{vRd}, v{vT2}, 4, v{vRd}"); a(f"v_add_u32 v{vRd}, s31, v{vRd}")
    a(f"v_lshrrev_b32 v{vSt}, 3, v{vL}"); a(f"v_lshlrev_b32 v{vSt}, 8, v{vSt}"); a(f"v_and_b32 v{tmp}, 7, v{vL}"); a(f"v_lshl_add_u32 v{vSt}, v{tmp}, 4, v{vSt}")
    a("s_lshr_b32 s42, s2, 1"); a("s_lshl_b32 s42, s42, 15"); a("s_and_b32 s31, s2, 1"); a("s_lshl_b32 s31, s31, 7"); a("s_add_u32 s42, s42, s31")
    a(f"s_lshl_b32 s31, s{sWave}, 11"); a("s_add_u32 s42, s42, s31")
    for i in range(1, 4): a(f"s_add_u32 s{42+i}, s42, {i*8192}")
    stamp(a, opt, 1)
    for i in range(8):
        a(f"s_waitcnt vmcnt({13-i})")
        mfma(a, DR, V + 4 * i, BR + 4 * i, i == 0); mfma(a, DI, V + 4 * i, BI + 4 * i, i == 0)
    stamp(a, opt, 2)
    cmul_pack(a, DR, DI, TC, TS, True, PR, PI, tmp)
    cstage(a, DR, DI, PR, PI, C, S, NS, False, True)
    a("s_waitcnt vmcnt(2)")
    for p in range(16):
        a(f"v_lshlrev_b32 v{V+2*p}, 16, v{X+p}"); a(f"v_and_b32 v{V+2*p+1}, 0xffff0000, v{X+p}")
    a(f"v_mov_b32 v{tmp+4}, {fl(2.0**-22)}")
    a(f"v_lshlrev_b32 v{vA}, 4, v{vL}")
    for q, D in ((0, DR), (1, DI)):
        for p in range(8):
            a(f"v_pk_fma_f32 {vr(D+2*p,2)}, {vr(D+2*p,2)}, {vr(tmp+4,2)}, {vr(V+16*q+2*p,2)} op_sel_hi:[1,0,1]")
            a(f"v_cvt_pk_bf16_f32 v{X+8*q+p}, v{D+2*p}, v{D+2*p+1}")
            if p == 0:
                a(f"v_pk_mul_f32 {vr(BR+4*q+2,2)}, {vr(D,2)}, {vr(D,2)}")
            else:
                a(f"v_pk_add_f32 {vr(BR+4*q,2)}, {vr(D if p == 1 else BR+4*q,2)}, {vr(D+2*p,2)}")
                a(f"v_pk_fma_f32 {vr(BR+4*q+2,2)}, {vr(D+2*p,2)}, {vr(D+2*p,2)}, {vr(BR+4*q+2,2)}")
        for e in range(2):
            if opt.get("xperm"): a(f"buffer_store_dwordx4 {vr(X+8*q+4*e,4)}, v{vA}, s[12:15], s{38+q} offen offset:{1024*e} {opt.get('sf','sc1')}")
            else: a(f"ds_write_b128 v{vW}, {vr(X+8*q+4*e,4)} offset:{128*e + 32*q}")
    for k in range(4): a(f"v_add_f32 v{tmp+k}, v{BR+2*k}, v{BR+2*k+1}")
    reduce4(a, tmp, tmp + 1, tmp + 2, tmp + 3, 46)
    ln_coef(a, 46, 47, tmp, tmp + 2); ln_coef(a, 48, 49, tmp + 4, tmp + 6)
    for q, D in ((0, DR), (1, DI)):
        for p in range(8):
            a(f"v_pk_fma_f32 {vr(D+2*p,2)}, {vr(D+2*p,2)}, {vr(tmp+4*q+2,2)}, {vr(tmp+4*q,2)} op_sel_hi:[1,0,0]")
            a(f"v_cvt_pk_bf16_f32 v{V+8*q+p}, v{D+2*p}, v{D+2*p+1}")
        for e in range(2): a(f"ds_write_b128 v{vW}, {vr(V+8*q+4*e,4)} offset:{AS + 128*e + 32*q}")
    a("s_waitcnt lgkmcnt(0)"); a("s_barrier")
    arrs = (1,) if opt.get("xperm") else (1, 0)
    for arr in arrs:
        for i in range(4): a(f"ds_read_b128 {vr(BR+16*arr+4*i,4)}, v{vRd} offset:{arr*AS + i*8*528}")
    n = 4 * len(arrs) - 1
    for arr in arrs:
        for i in range(4):
            a(f"s_waitcnt lgkmcnt({n})"); n -= 1
            a(f"buffer_store_dwordx4 {vr(BR+16*arr+4*i,4)}, v{vSt}, s[{20 if arr else 12}:{23 if arr else 15}], s{42+i} offen {opt.get('sf','sc1')}")
    stamp(a, opt, 3)
    stamp_out(a, opt, 4, opt.get("slot", 0), tmp)
    a(f"L_{name}_end:")
    a("s_endpgm")
    return L, 2 * AS, R.n
```

```python
from common import *

MB = 1 << 20
WS = {}
_o = 0
for _n, _sz in (("Z1", 5), ("V1", 5), ("X1", 4), ("XN1", 4), ("H1", 15), ("X2", 4), ("Z2", 5), ("V2", 5), ("X3", 4), ("XN2", 4), ("H2", 15),
                ("WT", 4), ("P1", 16), ("P2", 16)):
    WS[_n] = _o * MB; _o += _sz

S_A, S_B, S_O, S_R = 8, 12, 16, 20
sAoff, sBoff, sM0, sBuf, sLoop, sWave, sT0, sT1, sMT, sNT, sRd = 24, 25, 26, 27, 28, 29, 30, 31, 32, 33, 34

class G:
    def __init__(self, **kw):
        self.__dict__.update(kw)

def core(c, a):
    MF, NT, KS, T, DA, NA, NB, PD, RING = c.MF, c.NT, c.KS, c.T, c.DA, c.NA, c.NB, c.PD, c.RING
    DB = NB - 2
    ASZ = MF * KS * 4
    AB, BB = 0, NA * ASZ
    assert BB + RING * KS * 4 <= 256
    def areg(t, i, ks): r = AB + (t % NA) * ASZ + (i * KS + ks) * 4; return f"a[{r}:{r+3}]"
    def bslot(t, j): return BB + ((t * NT + j) % RING) * KS * 4
    def aloads(t):
        L = []
        for ks in range(KS):
            for i in range(MF):
                L.append([Op(f"buffer_load_dwordx4 {areg(t,i,ks)}, v{c.vA+i}, s[{S_A}:{S_A+3}], s{sAoff} offen offset:{ks*1024}", "vm", ("A", t))])
        L[-1].append(Op(f"s_add_u32 s{sAoff}, s{sAoff}, {KS*1024}"))
        return L
    def bdma(t):
        L = []
        for q in range(c.NDMA):
            grp = []
            if q % 4 == 0:
                grp.append(Op(f"s_add_u32 m0, s{sM0}, {(q//4)*4*c.DSTR}"))
                L.append(grp); grp = []
            grp.append(Op(f"buffer_load_dwordx4 v{c.vD+q}, s[{S_B}:{S_B+3}], s{sBoff} offen offset:{(q%4)*c.DSTR} lds", "vm", ("B", t)))
            L.append(grp)
        L.append([Op(f"s_add_u32 s{sBoff}, s{sBoff}, {c.BADV}")])
        L.append([Op(f"s_add_u32 s{sM0}, s{sM0}, {c.BST}")])
        L.append([Op(f"s_cmp_ge_u32 s{sM0}, {NB*c.BST}"), Op(f"s_cselect_b32 s{sT0}, {NB*c.BST}, 0")])
        L.append([Op(f"s_sub_u32 s{sM0}, s{sM0}, s{sT0}")])
        return L
    def reads(t, j):
        L = []
        for ks in range(KS):
            for hf in range(2):
                r = bslot(t, j) + ks * 4 + hf * 2
                L.append(Op(f"ds_read_b64_tr_b16 a[{r}:{r+1}], v{c.vR} offset:{c.roff(j, ks, hf)}", "ds", ("R", t, j)))
        return L
    def rd_advance():
        return [Op(f"s_add_u32 s{sRd}, s{sRd}, {c.BST}"), Op(f"s_cmp_ge_u32 s{sRd}, {NB*c.BST}"), Op(f"s_cselect_b32 s{sRd}, 0, s{sRd}")]
    pro = []
    for t in range(max(DA, DB)):
        if t < DB and t < T:
            for g in bdma(t):
                pro += g
                if g[0].text.startswith("s_add_u32 m0"): pro.append(Op("s_nop 0"))
        if t < DA and t < T:
            for g in aloads(t): pro += g
    for r in range(4 * MF * NT): pro.append(Op(f"v_mov_b32 v{r}, 0"))
    pro += c.pro_extra()
    pro.append(Op("", "wvm", ("B", 0)))
    pro.append(Op("s_barrier"))
    for j in range(PD): pro += reads(0, j)
    stages = []
    NM = MF * KS
    for t in range(T):
        fill = {}
        pre = {}
        def add(d, idx, ops): d.setdefault(idx, []).extend(ops)
        add(pre, 0, [Op("", "wvm", ("A", t))])
        for j in range(NT):
            add(pre, j * NM, [Op("", "wds", ("R", t, j))])
            tt, jj = (t, j + PD) if j + PD < NT else (t + 1, j + PD - NT)
            if tt < T:
                rr = reads(tt, jj)
                first = 0
                if tt > t and jj == 0:
                    add(fill, j * NM - 3, rd_advance()[:1]); add(fill, j * NM - 2, rd_advance()[1:])
                    add(fill, j * NM - 1, [Op(f"v_add_u32 v{c.vR}, s{sRd}, v{c.vR0}")])
                    add(fill, j * NM, [Op("", "wvm", ("B", tt)), Op("s_barrier")])
                for n, r in enumerate(rr):
                    add(fill, j * NM + (n * NM) // len(rr), [r])
        groups = []
        if t + DA < T: groups += aloads(t + DA)
        if t + DB < T: groups += bdma(t + DB)
        if getattr(c, "extra", None): groups += c.extra(t)
        lim = NT * NM - 4
        span = int(lim * c.SPAN)
        for n, g in enumerate(groups):
            idx = 1 + (n * span) // max(len(groups), 1)
            if c.MF >= 4: idx |= 1
            add(fill, min(idx, lim), g)
        st = []
        m = 0
        for j in range(NT):
            order = range(MF) if j % 2 == 0 else range(MF - 1, -1, -1)
            for i in order:
                for ks in range(KS):
                    st += pre.get(m, [])
                    d = 4 * (j * MF + i)
                    b = bslot(t, j) + ks * 4
                    st.append(Op(f"v_mfma_f32_16x16x32_bf16 v[{d}:{d+3}], a[{b}:{b+3}], {areg(t,i,ks)}, v[{d}:{d+3}]", "mfma"))
                    st += fill.get(m, [])
                    m += 1
        fixed = []
        for o in st:
            if fixed and fixed[-1].text.startswith("s_add_u32 m0") and o.text.endswith("lds"): fixed.append(Op("s_nop 0"))
            fixed.append(o)
        stages.append(fixed)
    flat = pro + [o for st in stages for o in st]
    resolve_waits(flat)
    for o in pro: a(o.text)
    if c.opt.get("stamp"): stamp(a, c.opt, 1); a("s_waitcnt lgkmcnt(0)")
    import math
    P = NA * (RING // math.gcd(RING, NT)) // math.gcd(NA, RING // math.gcd(RING, NT))
    for l in fold_loop([[o.text for o in st] for st in stages], P, f"L_{c.name}_loop", f"s{sLoop}"): a(l)

def wave_id(a):
    a(f"v_lshrrev_b32 v1, 6, v0")
    a("s_nop 0")
    a(f"v_readfirstlane_b32 s{sWave}, v1")

def gemm1(name, opt):
    L = []; a = L.append
    c = G(name=name, MF=4, NT=14, KS=2, T=16, DA=opt.get("DA", 1), NA=opt.get("NA", 2), NB=opt.get("NB", 4), PD=opt.get("PD", 2), RING=opt.get("RING", 7),
          NDMA=7, DSTR=1024, BST=28672, BADV=64 * 7168, SPAN=opt.get("SPAN", 1.0),
          vA=224, vD=228, vR=235, vR0=236)
    vL, vT, vT2, vS = 237, 238, 239, 240
    c.roff = lambda j, ks, hf: (j & 1) * 14336 + (32 * ks + 8 * hf) * 224 + (j >> 1) * 32
    a(f"L_{name}:")
    stamp(a, opt, 0)
    c.opt = opt
    a("s_cmp_ge_u32 s2, 256")
    a(f"s_cbranch_scc1 L_{name}_end")
    a("s_load_dwordx4 s[36:39], s[0:1], 32")
    wpf_load(a, 48)
    a("v_lshlrev_b32 v251, 7, v0")
    a("s_load_dwordx2 s[6:7], s[0:1], 72")
    wave_id(a)
    pf_addr(a, 250)
    a(f"v_and_b32 v{vL}, 63, v0")
    a(f"s_and_b32 s{sT0}, s2, 7"); a(f"s_lshr_b32 s{sT1}, s2, 3")
    if opt.get("map", "4x8") == "4x8":
        a(f"s_and_b32 s{sMT}, s{sT0}, 1"); a(f"s_lshl_b32 s{sMT}, s{sMT}, 2"); a(f"s_and_b32 s{sNT}, s{sT1}, 3"); a(f"s_add_u32 s{sMT}, s{sMT}, s{sNT}")
        a(f"s_lshr_b32 s{sNT}, s{sT0}, 1"); a(f"s_lshl_b32 s{sNT}, s{sNT}, 3"); a(f"s_lshr_b32 s{sT1}, s{sT1}, 2"); a(f"s_add_u32 s{sNT}, s{sNT}, s{sT1}")
    else:
        a(f"s_and_b32 s{sMT}, s{sT1}, 7"); a(f"s_lshl_b32 s{sNT}, s{sT0}, 2"); a(f"s_lshr_b32 s{sT1}, s{sT1}, 3"); a(f"s_add_u32 s{sNT}, s{sNT}, s{sT1}")
    a(f"v_lshlrev_b32 v{vT}, 4, v{vL}")
    a(f"s_lshl_b32 s{sT0}, s{sWave}, 17")
    a(f"v_add_u32 v{c.vA}, s{sT0}, v{vT}")
    for i in range(1, 4): a(f"v_add_u32 v{c.vA+i}, {i*32768}, v{c.vA}")
    a(f"s_lshl_b32 s{sAoff}, s{sMT}, 19")
    a(f"s_and_b32 s{sT0}, s{sWave}, 1"); a(f"s_mul_i32 s{sT0}, s{sT0}, 448")
    a(f"s_movk_i32 s{sT1}, 4682")
    a(f"s_mul_i32 s{sBoff}, s{sNT}, 224")
    for q in range(7):
        d = c.vD + q
        a(f"v_add_u32 v{vT}, s{sT0}, v{vL}")
        if q: a(f"v_add_u32 v{vT}, {q*64}, v{vT}")
        a(f"v_mul_u32_u24 v{vT2}, s{sT1}, v{vT}")
        a(f"v_lshrrev_b32 v{vT2}, 16, v{vT2}")
        a(f"v_mul_u32_u24 v{d}, 14, v{vT2}")
        a(f"v_sub_u32 v{vT}, v{vT}, v{d}")
        a(f"v_and_b32 v{d}, 0x33, v{vT2}")
        a(f"v_and_b32 v{vS}, 4, v{vT2}"); a(f"v_lshl_add_u32 v{d}, v{vS}, 1, v{d}")
        a(f"v_and_b32 v{vS}, 8, v{vT2}"); a(f"v_lshrrev_b32 v{vS}, 1, v{vS}"); a(f"v_add_u32 v{d}, v{d}, v{vS}")
        a(f"v_mul_u32_u24 v{d}, 7168, v{d}")
        a(f"v_lshl_add_u32 v{d}, v{vT}, 4, v{d}")
        if q % 4: a(f"v_subrev_u32 v{d}, {(q%4)*1024}, v{d}")
    a(f"s_mul_i32 s{sM0}, s{sWave}, 7168")
    a(f"v_lshrrev_b32 v{vT}, 5, v{vL}"); a(f"v_lshlrev_b32 v{vT}, 4, v{vT}")
    a(f"v_bfe_u32 v{vT2}, v{vL}, 2, 3"); a(f"v_add_u32 v{vT}, v{vT}, v{vT2}")
    a(f"v_mul_u32_u24 v{vT}, 224, v{vT}")
    a(f"v_and_b32 v{vT2}, 3, v{vL}"); a(f"v_lshl_add_u32 v{c.vR0}, v{vT2}, 3, v{vT}")
    a(f"v_mov_b32 v{c.vR}, v{c.vR0}")
    a(f"s_mov_b32 s{sRd}, 0")
    a("s_waitcnt lgkmcnt(0)")
    a(f"s_add_u32 s{S_A}, s6, s4"); a(f"s_addc_u32 s{S_A+1}, s7, 0"); a(f"s_and_b32 s{S_A+1}, s{S_A+1}, 0xffff"); a(f"s_mov_b32 s{S_A+2}, {4*MB}"); a(f"s_mov_b32 s{S_A+3}, 0x20000")
    a(f"s_add_u32 s{S_O}, s6, s5"); a(f"s_addc_u32 s{S_O+1}, s7, 0"); a(f"s_and_b32 s{S_O+1}, s{S_O+1}, 0xffff"); a(f"s_mov_b32 s{S_O+2}, {2048*3584*2}"); a(f"s_mov_b32 s{S_O+3}, 0x20000")
    a(f"s_cmp_ge_u32 s{sWave}, 2")
    a(f"s_cselect_b32 s{S_B}, s38, s36"); a(f"s_cselect_b32 s{S_B+1}, s39, s37"); a(f"s_and_b32 s{S_B+1}, s{S_B+1}, 0xffff"); a(f"s_mov_b32 s{S_B+2}, {1024*7168}"); a(f"s_mov_b32 s{S_B+3}, 0x20000")
    def pro_extra():
        P = []
        P.append(Op(f"v_bfe_u32 v{vT}, v{vL}, 4, 1")); P.append(Op(f"v_mul_u32_u24 v{vT}, 114688, v{vT}"))
        P.append(Op(f"v_lshrrev_b32 v{vT2}, 5, v{vL}")); P.append(Op(f"v_lshl_add_u32 v{vT}, v{vT2}, 8, v{vT}"))
        P.append(Op(f"v_and_b32 v{vT2}, 15, v{vL}")); P.append(Op(f"v_lshl_add_u32 v{vS}, v{vT2}, 4, v{vT}"))
        P.append(Op(f"v_add_u32 v{vS+1}, {2*114688}, v{vS}"))
        return P
    c.pro_extra = pro_extra
    c.extra = lambda t: [[Op("s_and_b32 s57, s57, 0xffff"), Op("s_mov_b32 s59, 0x20000")], [Op("s_mul_i32 s55, s2, 28672")],
                         [Op("buffer_load_dword v251, v251, s[56:59], s55 offen", "vm", "PF")]] if t == opt.get("wpft", 14) else []
    core(c, a)
    stamp(a, opt, 2)
    pf_issue(a, 250)
    a(f"s_lshl_b32 s{sT0}, s{sMT}, 2"); a(f"s_add_u32 s{sT0}, s{sT0}, s{sWave}"); a(f"s_mul_i32 s{sT0}, s{sT0}, {4*114688}")
    a(f"s_mul_i32 s{sT1}, s{sNT}, {14*256}"); a(f"s_add_u32 s{sT0}, s{sT0}, s{sT1}")
    a("s_nop 7")
    sf = opt.get("sf", "sc1")
    for j in range(7):
        for ip in range(2):
            g0 = 4 * ((2 * j) * 4 + 2 * ip); u0 = 4 * ((2 * j + 1) * 4 + 2 * ip)
            for r in range(0, 8, 2): a(f"v_pk_mul_f32 v[{g0+r}:{g0+r+1}], v[{g0+r}:{g0+r+1}], v[{u0+r}:{u0+r+1}]")
            for r in range(4): a(f"v_cvt_pk_bf16_f32 v{u0+r}, v{g0+2*r}, v{g0+2*r+1}")
            a("s_nop 1")
            a(f"v_permlane16_swap_b32 v{u0}, v{u0+2}"); a(f"v_permlane16_swap_b32 v{u0+1}, v{u0+3}")
            a(f"buffer_store_dwordx4 v[{u0}:{u0+3}], v{vS+ip}, s[{S_O}:{S_O+3}], s{sT0} offen offset:{j*512} {sf}")
    stamp_out(a, opt, 3, opt.get("slot", 0), vT)
    a(f"L_{name}_end:")
    a("s_endpgm")
    return L, c.NB * c.BST

def gemm2(name, opt):
    L = []; a = L.append
    SK = opt.get("SK", 1)
    MF, NT, KS = {1: (2, 4, 4), 2: (2, 8, opt.get("KS", 2)), 4: (4, 8, 2)}[SK]
    T = 3584 // SK // (32 * KS)
    RB = NT * 32; RPI = 1024 // RB; LPR = RB // 16
    NDMA = KS * NT // 4
    nacc = 4 * MF * NT
    c = G(name=name, MF=MF, NT=NT, KS=KS, T=T, DA=opt.get("DA", 2), NA=opt.get("NA", 3), NB=opt.get("NB", 4), PD=opt.get("PD", 2), RING=opt.get("RING", 4),
          NDMA=NDMA, DSTR=1056, BST=KS * NT * 1056, BADV=32 * KS * 2048, SPAN=opt.get("SPAN", 1.0),
          vA=nacc, vD=nacc + 4, vR=nacc + 12, vR0=nacc + 13, opt=opt)
    vL, vT, vT2, vS, vX = nacc + 14, nacc + 15, nacc + 16, nacc + 18, nacc + 24
    c.roff = lambda j, ks, hf: ((ks * 4) // RPI) * 8 * 1056 + ((ks * 4) % RPI + hf) * RB + j * 32
    sKH = 42
    a(f"L_{name}:")
    stamp(a, opt, 0)
    a("s_cmp_ge_u32 s2, 256")
    a(f"s_cbranch_scc1 L_{name}_end")
    a("s_load_dwordx4 s[36:39], s[0:1], 48")
    a("s_load_dwordx2 s[6:7], s[0:1], 72")
    wave_id(a)
    pf_addr(a, 250)
    a(f"v_and_b32 v{vL}, 63, v0")
    a(f"s_and_b32 s{sT0}, s2, 7"); a(f"s_lshr_b32 s{sT1}, s2, 3")
    if SK == 1:
        if opt.get("map", "4x8") == "4x8":
            a(f"s_lshr_b32 s{sMT}, s{sT0}, 1"); a(f"s_lshl_b32 s{sMT}, s{sMT}, 2"); a(f"s_and_b32 s{sNT}, s{sT1}, 3"); a(f"s_add_u32 s{sMT}, s{sMT}, s{sNT}")
            a(f"s_and_b32 s{sNT}, s{sT0}, 1"); a(f"s_lshl_b32 s{sNT}, s{sNT}, 3"); a(f"s_lshr_b32 s{sT1}, s{sT1}, 2"); a(f"s_add_u32 s{sNT}, s{sNT}, s{sT1}")
        else:
            a(f"s_lshl_b32 s{sMT}, s{sT0}, 1"); a(f"s_and_b32 s{sNT}, s{sT1}, 1"); a(f"s_add_u32 s{sMT}, s{sMT}, s{sNT}")
            a(f"s_lshr_b32 s{sNT}, s{sT1}, 1")
        a(f"s_mov_b32 s{sKH}, 0")
    elif SK == 2:
        a(f"s_and_b32 s{sKH}, s{sT0}, 1")
        a(f"s_lshr_b32 s{sMT}, s{sT0}, 1"); a(f"s_lshl_b32 s{sMT}, s{sMT}, 2"); a(f"s_and_b32 s{sNT}, s{sT1}, 3"); a(f"s_add_u32 s{sMT}, s{sMT}, s{sNT}")
        a(f"s_lshr_b32 s{sNT}, s{sT1}, 2")
    else:
        a(f"s_and_b32 s{sKH}, s{sT0}, 3")
        a(f"s_lshr_b32 s{sMT}, s{sT0}, 2"); a(f"s_lshl_b32 s{sMT}, s{sMT}, 2"); a(f"s_and_b32 s{sNT}, s{sT1}, 3"); a(f"s_add_u32 s{sMT}, s{sMT}, s{sNT}")
        a(f"s_lshr_b32 s{sNT}, s{sT1}, 2")
    a(f"v_lshlrev_b32 v{vT}, 4, v{vL}")
    a(f"s_mul_i32 s{sT0}, s{sWave}, {MF*114688}")
    a(f"v_add_u32 v{c.vA}, s{sT0}, v{vT}")
    for i in range(1, MF): a(f"v_add_u32 v{c.vA+i}, {i*114688}, v{c.vA}")
    a(f"s_mul_i32 s{sAoff}, s{sMT}, {4*MF*114688}")
    a(f"s_mul_i32 s{sT0}, s{sKH}, {3584//SK*32}"); a(f"s_add_u32 s{sAoff}, s{sAoff}, s{sT0}")
    a(f"s_mul_i32 s{sBoff}, s{sNT}, {RB}")
    a(f"s_mul_i32 s{sT0}, s{sKH}, {3584//SK*2048}"); a(f"s_add_u32 s{sBoff}, s{sBoff}, s{sT0}")
    lg = LPR.bit_length() - 1
    a(f"v_lshrrev_b32 v{vT}, {lg+1}, v{vL}"); a(f"v_lshlrev_b32 v{vT}, 4, v{vT}")
    a(f"v_bfe_u32 v{vT2}, v{vL}, {lg}, 1"); a(f"v_lshl_add_u32 v{vT}, v{vT2}, 2, v{vT}")
    a(f"v_lshlrev_b32 v{vT}, 11, v{vT}")
    a(f"v_and_b32 v{vT2}, {LPR-1}, v{vL}"); a(f"v_lshl_add_u32 v{vT}, v{vT2}, 4, v{vT}")
    if NDMA == 4:
        a(f"s_lshr_b32 s{sT0}, s{sWave}, 1"); a(f"s_mul_i32 s{sT0}, s{sT0}, {8*RPI*2048}")
        a(f"s_and_b32 s{sT1}, s{sWave}, 1"); a(f"s_mul_i32 s{sT1}, s{sT1}, {8*2048}"); a(f"s_add_u32 s{sT0}, s{sT0}, s{sT1}")
    else:
        assert NDMA == 8
        a(f"s_mul_i32 s{sT0}, s{sWave}, {8*RPI*2048}")
    a(f"v_add_u32 v{c.vD}, s{sT0}, v{vT}")
    for q in range(1, NDMA): a(f"v_add_u32 v{c.vD+q}, {(8*(q>>2)+(q&3))*2048 - (q%4)*1056}, v{c.vD}")
    a(f"s_mul_i32 s{sM0}, s{sWave}, {NDMA*1056}")
    a(f"v_bfe_u32 v{vT}, v{vL}, 2, 3"); a(f"v_mul_u32_u24 v{vT}, 1056, v{vT}")
    a(f"v_lshrrev_b32 v{vT2}, 5, v{vL}"); a(f"v_mul_u32_u24 v{vT2}, {2*RB}, v{vT2}"); a(f"v_add_u32 v{vT}, v{vT}, v{vT2}")
    a(f"v_and_b32 v{vT2}, 3, v{vL}"); a(f"v_lshl_add_u32 v{c.vR0}, v{vT2}, 3, v{vT}")
    a(f"v_mov_b32 v{c.vR}, v{c.vR0}")
    a(f"s_mov_b32 s{sRd}, 0")
    a("s_waitcnt lgkmcnt(0)")
    a(f"s_add_u32 s{S_A}, s6, s4"); a(f"s_addc_u32 s{S_A+1}, s7, 0"); a(f"s_and_b32 s{S_A+1}, s{S_A+1}, 0xffff"); a(f"s_mov_b32 s{S_A+2}, {2048*3584*2}"); a(f"s_mov_b32 s{S_A+3}, 0x20000")
    a(f"s_add_u32 s{S_R}, s6, s5"); a(f"s_addc_u32 s{S_R+1}, s7, 0"); a(f"s_and_b32 s{S_R+1}, s{S_R+1}, 0xffff"); a(f"s_mov_b32 s{S_R+2}, {4*MB}"); a(f"s_mov_b32 s{S_R+3}, 0x20000")
    srd(a, S_B, "s36", "s37", 3584 * 2048)
    a(f"s_mul_i32 s{sT0}, s{sKH}, {4*MB}"); a(f"s_add_u32 s35, s35, s{sT0}")
    a(f"s_add_u32 s40, s6, s35"); a(f"s_addc_u32 s41, s7, 0")
    a("s_cmp_eq_u32 s3, 1")
    a(f"s_cselect_b32 s{S_O}, s38, s40"); a(f"s_cselect_b32 s{S_O+1}, s39, s41"); a(f"s_and_b32 s{S_O+1}, s{S_O+1}, 0xffff"); a(f"s_mov_b32 s{S_O+2}, {4*MB}"); a(f"s_mov_b32 s{S_O+3}, 0x20000")
    def pro_extra():
        P = []
        def p(t, k="x", tag=None): P.append(Op(t, k, tag))
        p(f"s_lshl_b32 s{sT0}, s{sMT}, 2"); p(f"s_add_u32 s{sT0}, s{sT0}, s{sWave}"); p(f"s_mul_i32 s{sT0}, s{sT0}, {MF*2}")
        p(f"s_lshr_b32 s{sT1}, s{sT0}, 5"); p(f"s_lshl_b32 s{sT1}, s{sT1}, 6"); p(f"s_and_b32 s43, s{sT0}, 31"); p(f"s_add_u32 s{sT1}, s{sT1}, s43")
        p(f"s_lshl_b32 s{sT1}, s{sT1}, 11"); p(f"s_mul_i32 s43, s{sNT}, {RB}"); p(f"s_add_u32 s43, s43, s{sT1}")
        p(f"v_bfe_u32 v{vT}, v{vL}, 3, 1")
        p(f"v_bfe_u32 v{vT2}, v{vL}, 2, 1"); p(f"v_lshl_add_u32 v{vT}, v{vT2}, 5, v{vT}")
        p(f"v_bfe_u32 v{vT2}, v{vL}, 1, 1"); p(f"v_lshl_add_u32 v{vT}, v{vT2}, 9, v{vT}")
        p(f"v_and_b32 v{vT2}, 1, v{vL}"); p(f"v_lshl_add_u32 v{vT}, v{vT2}, 10, v{vT}")
        p(f"v_lshlrev_b32 v{vT}, 11, v{vT}")
        p(f"v_bfe_u32 v{vT2}, v{vL}, 4, 1"); p(f"v_lshl_add_u32 v{vT}, v{vT2}, 5, v{vT}")
        p(f"v_lshrrev_b32 v{vT2}, 5, v{vL}"); p(f"v_lshl_add_u32 v{vS}, v{vT2}, 4, v{vT}")
        for i in range(1, MF): p(f"v_add_u32 v{vS+i}, {i*2*2048}, v{vS}")
        if SK == 1:
            p(f"s_mul_i32 s{sT0}, s{sT0}, 16384"); p(f"s_mul_i32 s{sT1}, s{sNT}, {NT*2*256}"); p(f"s_add_u32 s{sT0}, s{sT0}, s{sT1}")
            p(f"v_bfe_u32 v{vT}, v{vL}, 4, 1"); p(f"v_lshlrev_b32 v{vT}, 9, v{vT}")
            p(f"v_lshrrev_b32 v{vT2}, 5, v{vL}"); p(f"v_lshl_add_u32 v{vT}, v{vT2}, 8, v{vT}")
            p(f"v_and_b32 v{vT2}, 15, v{vL}"); p(f"v_lshl_add_u32 v{vT}, v{vT2}, 4, v{vT}")
            p(f"v_add_u32 v{vT2}, 32768, v{vT}")
            for i in range(MF):
                for jp in range(NT // 2):
                    r = vX + 4 * (i * (NT // 2) + jp)
                    p(f"buffer_load_dwordx4 v[{r}:{r+3}], v{vT+i}, s[{S_R}:{S_R+3}], s{sT0} offen offset:{jp*1024}", "vm", "X")
        return P
    c.pro_extra = pro_extra
    core(c, a)
    stamp(a, opt, 2)
    pf_issue(a, 250)
    sf = opt.get("sf", "sc1")
    a("s_nop 7")
    for i in range(MF):
        for jp in range(NT // 2):
            x0 = 4 * ((2 * jp) * MF + i); y0 = 4 * ((2 * jp + 1) * MF + i)
            if SK == 1:
                r = vX + 4 * (i * (NT // 2) + jp)
                a(f"v_permlane16_swap_b32 v{r}, v{r+2}"); a(f"v_permlane16_swap_b32 v{r+1}, v{r+3}")
                for n, d in enumerate((x0, x0 + 2, y0, y0 + 2)):
                    a(f"v_lshlrev_b32 v{vT2}, 16, v{r+n}"); a(f"v_and_b32 v{vT2+1}, 0xffff0000, v{r+n}")
                    a(f"v_pk_add_f32 v[{d}:{d+1}], v[{d}:{d+1}], v[{vT2}:{vT2+1}]")
            a(f"v_cvt_pk_bf16_f32 v{x0}, v{x0}, v{x0+1}"); a(f"v_cvt_pk_bf16_f32 v{x0+1}, v{x0+2}, v{x0+3}")
            a(f"v_cvt_pk_bf16_f32 v{x0+2}, v{y0}, v{y0+1}"); a(f"v_cvt_pk_bf16_f32 v{x0+3}, v{y0+2}, v{y0+3}")
            a("s_nop 1")
            a(f"v_permlane16_swap_b32 v{x0}, v{x0+2}"); a(f"v_permlane16_swap_b32 v{x0+1}, v{x0+3}")
            a(f"buffer_store_dwordx4 v[{x0}:{x0+3}], v{vS+i}, s[{S_O}:{S_O+3}], s43 offen offset:{jp*64} {sf}")
    stamp_out(a, opt, 3, opt.get("slot", 0), vT)
    a(f"L_{name}_end:")
    a("s_endpgm")
    return L, c.NB * c.BST
```

```python
import sys
def kd(name, vgpr=256, accum=256, sgpr=96):
    return f""".section .rodata,"a"
.p2align 6
.amdhsa_kernel {name}
  .amdhsa_next_free_vgpr {vgpr}
  .amdhsa_next_free_sgpr {sgpr}
  .amdhsa_accum_offset {accum}
  .amdhsa_group_segment_fixed_size 0
  .amdhsa_kernarg_size 80
  .amdhsa_user_sgpr_count 2
  .amdhsa_user_sgpr_kernarg_segment_ptr 1
  .amdhsa_system_sgpr_workgroup_id_x 1
.end_amdhsa_kernel
.text
"""
def gen(name, mode, nload, nmfma, iters, wsz, inflight, shape16=True):
    L = []
    a = L.append
    a(f".globl {name}\n.p2align 8\n.type {name},@function\n{name}:")
    a("s_cmp_ge_u32 s2, 256\ns_cbranch_scc1 END_%s" % name)
    a("s_load_dwordx2 s[4:5], s[0:1], 72")
    a("s_load_dwordx2 s[6:7], s[0:1], 56")
    a("s_waitcnt lgkmcnt(0)")
    a("s_mov_b32 s8, s4\ns_and_b32 s9, s5, 0xffff\ns_mov_b32 s10, 0x4000000\ns_mov_b32 s11, 0x20000")
    a("s_mov_b32 s12, s6\ns_and_b32 s13, s7, 0xffff\ns_mov_b32 s14, 0x400000\ns_mov_b32 s15, 0x20000")
    a("v_lshrrev_b32 v2, 6, v0")
    a("s_nop 0")
    a("v_readfirstlane_b32 s16, v2")
    a("v_and_b32 v1, 63, v0")
    a("v_lshlrev_b32 v1, 4, v1")
    a("s_lshl_b32 s17, s2, 2\ns_add_u32 s17, s17, s16")
    a(f"s_mul_i32 s17, s17, {nload*1024*7}")
    a(f"s_and_b32 s17, s17, {wsz-1}")
    a(f"s_mul_i32 s18, s16, {16*1024}")
    for i in range(64, 64+128): a(f"v_mov_b32 v{i}, 0")
    for i in range(8, 16): a(f"v_mov_b32 v{i}, 0x3f803f80")
    a("s_barrier")
    a("s_memtime s[20:21]\ns_memrealtime s[22:23]")
    a(f"s_mov_b32 s19, {iters}")
    a(f"LOOP_{name}:")
    per = (nmfma // nload) if nload else nmfma
    m = 0
    def mf():
        nonlocal m
        if shape16:
            d = 64 + 4*(m % 32)
            a(f"v_mfma_f32_16x16x32_bf16 v[{d}:{d+3}], v[8:11], v[12:15], v[{d}:{d+3}]")
        else:
            d = 64 + 16*(m % 8)
            a(f"v_mfma_f32_32x32x16_bf16 v[{d}:{d+15}], v[8:11], v[12:15], v[{d}:{d+15}]")
        m += 1
    for i in range(nload):
        if mode == "vgpr":
            d = 16 + 4*(i % 12)
            a(f"buffer_load_dwordx4 v[{d}:{d+3}], v1, s[8:11], s17 offen")
        else:
            a(f"s_add_u32 m0, s18, {(i%16)*1024}")
            a("s_nop 0")
            a(f"buffer_load_dwordx4 v1, s[8:11], s17 offen lds")
        a("s_add_u32 s17, s17, 1024")
        a(f"s_and_b32 s17, s17, {wsz-1}")
        a(f"s_waitcnt vmcnt({inflight})")
        for _ in range(per): mf()
    while m < nmfma: mf()
    a("s_sub_u32 s19, s19, 1\ns_cmp_lg_u32 s19, 0")
    a(f"s_cbranch_scc1 LOOP_{name}")
    a("s_waitcnt vmcnt(0)")
    a("s_memtime s[24:25]\ns_memrealtime s[26:27]\ns_waitcnt lgkmcnt(0)")
    a("s_sub_u32 s24, s24, s20\ns_sub_u32 s26, s26, s22")
    a("v_mov_b32 v4, s24\nv_mov_b32 v5, s26")
    a("s_lshl_b32 s17, s2, 2\ns_add_u32 s17, s17, s16\ns_lshl_b32 s17, s17, 3")
    a("v_mov_b32 v6, s17")
    a("v_cmp_eq_u32 vcc, 0, v1\ns_and_saveexec_b64 s[28:29], vcc")
    a("buffer_store_dwordx2 v[4:5], v6, s[12:15], 0 offen")
    a("s_waitcnt vmcnt(0)")
    a(f"END_{name}:\ns_endpgm")
    return "\n".join(L) + "\n" + kd(name)

if __name__ == "__main__":
    cfgs = []
    for mode in ("vgpr", "lds"):
        for wsz in (1<<21, 1<<25):
            for inflight in (4, 10):
                cfgs.append((mode, 12, 0, 200, wsz, inflight, True))
    for mode in ("vgpr", "lds"):
        cfgs.append((mode, 8, 56, 200, 1<<21, 10, True))
        cfgs.append((mode, 12, 36, 200, 1<<21, 10, True))
        cfgs.append((mode, 8, 32, 200, 1<<21, 10, True))
        cfgs.append((mode, 8, 24, 200, 1<<21, 10, False))
    cfgs.append(("vgpr", 0, 56, 200, 1<<21, 10, True))
    cfgs.append(("vgpr", 0, 28, 200, 1<<21, 10, False))
    import json
    json.dump(cfgs, open("mb1.json", "w"))
    for i, c in enumerate(cfgs):
        name = "k_kernel"
        s = f"; @launch kernel={name} grid=(256,1,1) block=(256,1,1) lds=65536\n" + '.amdgcn_target "amdgcn-amd-amdhsa--gfx950"\n.text\n' + gen(name, *c)
        open(f"mb1_{i}.s", "w").write(s)
```

```python
import sys, json
from mb1 import kd
K = {
 "pk_fma": lambda m: f"v_pk_fma_f32 v[{16+2*(m%16)}:{17+2*(m%16)}], v[8:9], v[10:11], v[12:13]",
 "pk_mul": lambda m: f"v_pk_mul_f32 v[{16+2*(m%16)}:{17+2*(m%16)}], v[8:9], v[10:11]",
 "fma": lambda m: f"v_fma_f32 v{16+m%32}, v8, v9, v10",
 "fmac": lambda m: f"v_fmac_f32 v{16+m%32}, v8, v9",
 "cvt": lambda m: f"v_cvt_pk_bf16_f32 v{16+m%32}, v8, v9",
 "dot2": lambda m: f"v_dot2_f32_bf16 v{16+m%32}, v8, v9, v{16+m%32}",
 "dot2c": lambda m: f"v_dot2c_f32_bf16 v{16+m%32}, v8, v9",
 "sin": lambda m: f"v_sin_f32 v{16+m%32}, v8",
 "sinmix": lambda m: f"v_sin_f32 v{16+m%32}, v8" if m % 2 else f"v_mul_f32 v{16+m%32}, v8, v9",
 "swap": lambda m: f"v_permlane16_swap_b32 v{16+2*(m%16)}, v{17+2*(m%16)}",
 "salu": lambda m: f"s_add_u32 s{40+m%8}, s30, s31",
 "depfma": lambda m: f"v_fmac_f32 v16, v8, v9",
 "deppk": lambda m: f"v_pk_fma_f32 v[16:17], v[8:9], v[10:11], v[16:17]",
 "accrd": lambda m: f"v_accvgpr_read_b32 v{16+m%32}, a{m%32}",
}
def gen(name, kind, n, loops, idx):
    L = []; a = L.append
    a(f".globl {name}\n.p2align 8\n.type {name},@function\n{name}:")
    a("s_cmp_ge_u32 s2, 256\ns_cbranch_scc1 END_%s" % name)
    a("s_load_dwordx2 s[6:7], s[0:1], 56\ns_waitcnt lgkmcnt(0)")
    a("s_mov_b32 s12, s6\ns_and_b32 s13, s7, 0xffff\ns_mov_b32 s14, 0x400000\ns_mov_b32 s15, 0x20000")
    a(f"s_mov_b32 s19, {loops}")
    a("s_memtime s[22:23]")
    a(f"LP_{name}:")
    for m in range(n): a(K[kind](m))
    a(f"s_sub_u32 s19, s19, 1\ns_cmp_lg_u32 s19, 0\ns_cbranch_scc1 LP_{name}")
    a("s_memtime s[24:25]\ns_waitcnt lgkmcnt(0)")
    a("s_sub_u32 s24, s24, s22\ns_nop 15\nv_mov_b32 v4, s24")
    a("v_lshrrev_b32 v2, 6, v0\ns_nop 0\nv_readfirstlane_b32 s16, v2")
    a(f"s_lshl_b32 s17, s2, 2\ns_add_u32 s17, s17, s16\ns_lshl_b32 s17, s17, 2\ns_add_u32 s17, s17, {idx*4096}")
    a("v_mov_b32 v6, s17\nv_and_b32 v1, 63, v0")
    a("v_cmp_eq_u32 vcc, 0, v1\ns_and_saveexec_b64 s[28:29], vcc")
    a("buffer_store_dword v4, v6, s[12:15], 0 offen")
    a(f"END_{name}:\ns_endpgm")
    return "\n".join(L) + "\n" + kd(name, vgpr=128, accum=64)
if __name__ == "__main__":
    cfgs = [(k, n, l) for k in K for n, l in ((512, 1), (128, 16))]
    json.dump(cfgs, open("mb11.json", "w"))
    s = ""
    for k in range(len(cfgs)): s += f"; @launch kernel=k{k}_kernel grid=(256,1,1) block=(256,1,1) lds=0\n"
    s += '.amdgcn_target "amdgcn-amd-amdhsa--gfx950"\n.text\n'
    for k, c in enumerate(cfgs): s += gen(f"k{k}_kernel", c[0], c[1], c[2], k)
    open("mb11.s", "w").write(s)
```

```python
import sys, json
from mb1 import kd
def gen(name, idx, nstore, nload, sf, nreg, inter, shift, lf=''):
    L = []
    a = L.append
    a(f".globl {name}\n.p2align 8\n.type {name},@function\n{name}:")
    a("s_memrealtime s[22:23]")
    a("s_cmp_ge_u32 s2, 256\ns_cbranch_scc1 END_%s" % name)
    a("s_load_dwordx2 s[4:5], s[0:1], 72")
    a("s_load_dwordx2 s[6:7], s[0:1], 56")
    a("s_waitcnt lgkmcnt(0)")
    a("s_mov_b32 s8, s4\ns_and_b32 s9, s5, 0xffff\ns_mov_b32 s10, 0x10000000\ns_mov_b32 s11, 0x20000")
    a("s_mov_b32 s12, s6\ns_and_b32 s13, s7, 0xffff\ns_mov_b32 s14, 0x400000\ns_mov_b32 s15, 0x20000")
    a("v_lshlrev_b32 v1, 4, v0")
    n = max(nload, nstore, 1)
    wstride, istride = (4096, 4096*256) if inter else (n*4096, 4096)
    a(f"s_add_u32 s17, s2, {shift}\ns_and_b32 s17, s17, 255")
    a(f"s_mul_i32 s17, s17, {wstride}")
    a(f"s_add_u32 s17, s17, {((idx-1)%nreg)*(1<<24)}")
    for i in range(nload):
        a(f"buffer_load_dwordx4 v[{8+4*(i%8)}:{11+4*(i%8)}], v1, s[8:11], s17 offen {lf}")
        a(f"s_add_u32 s17, s17, {istride}")
    a("s_waitcnt vmcnt(0)")
    a("s_memrealtime s[24:25]")
    a(f"s_mul_i32 s17, s2, {wstride}")
    a(f"s_add_u32 s17, s17, {(idx%nreg)*(1<<24)}")
    for i in range(nstore):
        a(f"buffer_store_dwordx4 v[8:11], v1, s[8:11], s17 offen {sf}")
        a(f"s_add_u32 s17, s17, {istride}")
    a("s_waitcnt vmcnt(0)")
    a("s_memrealtime s[26:27]\ns_waitcnt lgkmcnt(0)")
    a("v_mov_b32 v4, s22\nv_mov_b32 v5, s24\nv_mov_b32 v6, s26\nv_mov_b32 v7, 0")
    a(f"s_lshl_b32 s17, s2, 4\ns_add_u32 s17, s17, {idx*4096}")
    a("v_mov_b32 v2, s17")
    a("v_cmp_eq_u32 vcc, 0, v0\ns_and_saveexec_b64 s[28:29], vcc")
    a("buffer_store_dwordx4 v[4:7], v2, s[12:15], 0 offen")
    a(f"END_{name}:\ns_endpgm")
    return "\n".join(L) + "\n" + kd(name, vgpr=64, accum=64)
if __name__ == "__main__":
    cfgs = [(4,4,'sc1',2,True,37,lf) for lf in ('', 'nt', 'sc1', 'sc1 nt', 'sc0 sc1', 'sc0 sc1 nt', 'sc0 nt')] + [(4,4,'sc1',10,True,37,''), (4,4,'sc0 sc1',2,True,37,''), (4,4,'sc1 nt',2,True,37,'nt')]
    json.dump(cfgs, open("mb4.json", "w"))
    N = 10
    for i, c in enumerate(cfgs):
        s = ""
        for k in range(N): s += f"; @launch kernel=k{k}_kernel grid=(256,1,1) block=(256,1,1) lds=0\n"
        s += '.amdgcn_target "amdgcn-amd-amdhsa--gfx950"\n.text\n'
        for k in range(N): s += gen(f"k{k}_kernel", k, *c)
        open(f"mb4_{i}.s", "w").write(s)
```

```python
import sys, json
from mb1 import kd
def seq(order):
    S = []
    if order == "a4":
        for j in range(14):
            for i in range(4): S.append((j*4+i, 4+j, i))
    elif order == "a4snake":
        for j in range(14):
            r = range(4) if j % 2 == 0 else range(3, -1, -1)
            for i in r: S.append((j*4+i, 4+j, i))
    elif order == "b4":
        for j in range(14):
            for i in range(4): S.append((j*4+i, i, 4+j))
    elif order == "a14":
        for i in range(4):
            for j in range(14): S.append((j*4+i, i, 4+j))
    elif order == "b14":
        for i in range(4):
            for j in range(14): S.append((j*4+i, 4+j, i))
    elif order == "chain2":
        for m in range(28):
            S.append((m, 4+(m % 14), m % 4)); S.append((m, 4+((m+7) % 14), (m+1) % 4))
    elif order == "chain4":
        for m in range(14):
            for t in range(4): S.append((m, 4+((m+3*t) % 14), t))
    elif order == "diag":
        for m in range(56): S.append((m, 4+(m % 14), m % 4))
    elif order == "same":
        for m in range(56): S.append((m, 4, 0))
    elif order == "sameall":
        for m in range(56): S.append((0, 4, 0))
    return S
def gen(name, order, accv, iters, op, idle=0, every=1):
    L = []
    a = L.append
    a(f".globl {name}\n.p2align 8\n.type {name},@function\n{name}:")
    a("s_cmp_ge_u32 s2, 256\ns_cbranch_scc1 END_%s" % name)
    a("s_load_dwordx2 s[4:5], s[0:1], 72")
    a("s_load_dwordx2 s[6:7], s[0:1], 56")
    a("s_waitcnt lgkmcnt(0)")
    a("s_mov_b32 s8, s4\ns_and_b32 s9, s5, 0xffff\ns_mov_b32 s10, 0x4000000\ns_mov_b32 s11, 0x20000")
    a("s_mov_b32 s12, s6\ns_and_b32 s13, s7, 0xffff\ns_mov_b32 s14, 0x400000\ns_mov_b32 s15, 0x20000")
    a("v_lshrrev_b32 v2, 6, v0")
    a("s_nop 0")
    a("v_readfirstlane_b32 s16, v2")
    a("v_and_b32 v1, 63, v0")
    a("v_lshlrev_b32 v1, 4, v1")
    a("s_lshl_b32 s17, s2, 2\ns_add_u32 s17, s17, s16")
    a(f"s_mul_i32 s17, s17, {20*1024}")
    fr = "a" if accv else "v"
    ac = "v" if accv else "a"
    ab = 8 if accv else 0
    for i in range(18):
        d = 8 + 4*i
        a(f"buffer_load_dwordx4 {fr}[{d}:{d+3}], v1, s[8:11], s17 offen")
        a("s_add_u32 s17, s17, 1024")
    for i in range(224):
        a(f"v_mov_b32 v{ab+i}, 0" if accv else f"v_accvgpr_write_b32 a{i}, 0")
    a("s_waitcnt vmcnt(0)")
    a("s_barrier")
    a("s_memtime s[20:21]\ns_memrealtime s[22:23]")
    a(f"s_mov_b32 s19, {iters}")
    a(f"LOOP_{name}:")
    for (m, x, y) in seq(order):
        d = ab + 4*m
        a(f"{op} {ac}[{d}:{d+3}], {fr}[{8+4*x}:{11+4*x}], {fr}[{8+4*y}:{11+4*y}], {ac}[{d}:{d+3}]")
    if idle:
        a(f"s_and_b32 s30, s19, {every-1}\ns_cmp_lg_u32 s30, 0\ns_cbranch_scc1 NI_{name}")
        a(f"s_sleep {idle}")
        a(f"NI_{name}:")
    a("s_sub_u32 s19, s19, 1\ns_cmp_lg_u32 s19, 0")
    a(f"s_cbranch_scc1 LOOP_{name}")
    a("s_waitcnt vmcnt(0) lgkmcnt(0)")
    a("s_memtime s[24:25]\ns_memrealtime s[26:27]\ns_waitcnt lgkmcnt(0)")
    a("s_sub_u32 s24, s24, s20\ns_sub_u32 s26, s26, s22")
    a("s_nop 15")
    a("v_mov_b32 v4, s24\nv_mov_b32 v5, s26")
    a("s_lshl_b32 s17, s2, 2\ns_add_u32 s17, s17, s16\ns_lshl_b32 s17, s17, 3")
    a("v_mov_b32 v6, s17")
    a("v_cmp_eq_u32 vcc, 0, v1\ns_and_saveexec_b64 s[28:29], vcc")
    a("buffer_store_dwordx2 v[4:5], v6, s[12:15], 0 offen")
    a("s_waitcnt vmcnt(0)")
    a(f"END_{name}:\ns_endpgm")
    return "\n".join(L) + "\n" + kd(name, vgpr=512, accum=256)
if __name__ == "__main__":
    cfgs = [("chain2", True, 48, "v_mfma_f32_16x16x32_bf16", i, e) for i, e in ((0,1),(1,2),(1,1),(2,1),(4,1),(8,1),(8,8),(16,8),(32,8),(64,16),(0,1))]
    json.dump(cfgs, open("mb3.json", "w"))
    for i, c in enumerate(cfgs):
        name = "k_kernel"
        s = f"; @launch kernel={name} grid=(256,1,1) block=(256,1,1) lds=65536\n" + '.amdgcn_target "amdgcn-amd-amdhsa--gfx950"\n.text\n' + gen(name, *c)
        open(f"mb3_{i}.s", "w").write(s)
```
